```python
import torch

def _softmax(x, axis=-1):
    return torch.softmax(x, dim=axis)
def _gelu(x):
    return torch.nn.functional.gelu(x, approximate="tanh")
def _silu(x):
    return torch.nn.functional.silu(x)
def _sigmoid(x):
    return torch.sigmoid(x)
def _layernorm(x, axis=-1, eps=1e-5):
    m = x.mean(dim=axis, keepdim=True)
    v = x.var(dim=axis, keepdim=True, unbiased=False)
    return (x - m) / torch.sqrt(v + eps)
def _scatter_add(tgt, idx, src, axis=0):
    return tgt.clone().index_add_(axis, idx, src)
def _segment_sum(src, seg, n):
    out = torch.zeros((n,) + src.shape[1:], dtype=src.dtype)
    return out.index_add_(0, seg, src)
def _pad(x, pw):
    flat = tuple(v for pair in reversed(pw) for v in pair)
    return torch.nn.functional.pad(x, flat)

kernel_name = 'concat_heads__sliding_block_cached__mha_block_cached__decode'

def setup_inputs():

    _w = (lambda a: (lambda t: t.to(torch.bfloat16) if t.is_floating_point() else t)(torch.as_tensor(a)))
    def _A_setup():
        B, Sq, D = 2, 1, 512
        Hq, Hkv, Sk, Dh = 32, 8, 16384, 128
        assert Hq % Hkv == 0, (Hq, Hkv)
        return {
            "x": _w((lambda *s: torch.randn(*s, dtype=torch.bfloat16) * 0.8)(B, Sq, D)),
            "k_cache": _w((lambda *s: torch.randn(*s, dtype=torch.bfloat16) * 1.6)(B, Hkv, Sk, Dh)),
            "v_cache": _w((lambda *s: torch.randn(*s, dtype=torch.bfloat16) * 0.2)(B, Hkv, Sk, Dh)),
            "wq": _w((lambda *s: torch.randn(*s, dtype=torch.bfloat16) * 1.6)(D, Hq * Dh) * (D ** -0.5)),
            "wo": _w((lambda *s: torch.randn(*s, dtype=torch.bfloat16) * 0.2)(Hq * Dh, D) * ((Hq * Dh) ** -0.5)),
        }
    _A_in = _A_setup()

    def _B_setup():
        B, Sq, D = 2, 1, 512
        H, Sk, Dh = 32, 16384, 128
        return {
            "x": _w((lambda *s: torch.randn(*s, dtype=torch.bfloat16) * 0.8)(B, Sq, D)),
            "k_cache": _w((lambda *s: torch.randn(*s, dtype=torch.bfloat16) * 1.6)(B, H, Sk, Dh)),
            "v_cache": _w((lambda *s: torch.randn(*s, dtype=torch.bfloat16) * 0.2)(B, H, Sk, Dh)),
            "wq": _w((lambda *s: torch.randn(*s, dtype=torch.bfloat16) * 1.6)(D, H * Dh) * (D ** -0.5)),
            "wo": _w((lambda *s: torch.randn(*s, dtype=torch.bfloat16) * 0.2)(H * Dh, D) * ((H * Dh) ** -0.5)),
        }
    _B_in = _B_setup()

    return {
        "A_x": _A_in["x"],
        "A_k_cache": _A_in["k_cache"],
        "A_v_cache": _A_in["v_cache"],
        "A_wq": _A_in["wq"],
        "A_wo": _A_in["wo"],
        "B_x": _B_in["x"],
        "B_k_cache": _B_in["k_cache"],
        "B_v_cache": _B_in["v_cache"],
        "B_wq": _B_in["wq"],
        "B_wo": _B_in["wo"],
    }

def reference(A_x, A_k_cache, A_v_cache, A_wq, A_wo, B_x, B_k_cache, B_v_cache, B_wq, B_wo):
    def _A_ref(x, k_cache, v_cache, wq, wo):
        B, Sq, D = x.shape
        Hq, Dh = 32, 128
        Hkv, Sk = k_cache.shape[1], k_cache.shape[2]
        W = min(4096, max(256, Sk // 4))
        rep = Hq // Hkv
        q = (lambda x, *d: x.permute(*d))((x @ wq).reshape(B, Sq, Hq, Dh), 0, 2, 1, 3)
        k = (lambda x, n, axis: torch.repeat_interleave(x, n, dim=axis))(k_cache[:, :, Sk - W:, :], rep, axis=1)
        v = (lambda x, n, axis: torch.repeat_interleave(x, n, dim=axis))(v_cache[:, :, Sk - W:, :], rep, axis=1)
        scores = torch.einsum("bhqd,bhkd->bhqk", q, k) * (Dh ** -0.5)
        p = _softmax(scores, axis=-1)
        o = torch.einsum("bhqk,bhkd->bhqd", p, v)
        return (lambda x, *d: x.permute(*d))(o, 0, 2, 1, 3).reshape(B, Sq, Hq * Dh) @ wo

    def _B_ref(x, k_cache, v_cache, wq, wo):
        B, Sq, D = x.shape
        H, Dh = 32, 128
        q = (lambda x, *d: x.permute(*d))((x @ wq).reshape(B, Sq, H, Dh), 0, 2, 1, 3)
        scores = torch.einsum("bhqd,bhkd->bhqk", q, k_cache) * (Dh ** -0.5)
        p = _softmax(scores, axis=-1)
        o = torch.einsum("bhqk,bhkd->bhqd", p, v_cache)
        return (lambda x, *d: x.permute(*d))(o, 0, 2, 1, 3).reshape(B, Sq, H * Dh) @ wo

    a = _A_ref(A_x, A_k_cache, A_v_cache, A_wq, A_wo)
    b = _B_ref(B_x, B_k_cache, B_v_cache, B_wq, B_wo)
    return torch.concatenate([a, b], axis=-1)
```

```python
import sys, struct

NAME = "concat_heads__sliding_block_cached__mha_block_cached__decode"
KN = NAME + "_kernel"

def f2u(f): return struct.unpack("<I", struct.pack("<f", f))[0]

class Gen:
    def __init__(self, **opt):
        self.L = []
        self.opt = opt
        self.lab = 0
    def A(self, s):
        for line in s.split("\n"):
            self.L.append("    " + line.strip() if not line.strip().endswith(":") else line.strip())
    def label(self, base):
        self.lab += 1
        return f"L_{base}_{self.lab}"

QP_OFF = 0x1000
RA_OFF = 0x100000
RB_OFF = 0x300000
YP_OFF = 0x400000
ST_OFF = 0x800000
REC = 1088
DQ = 0; DA = 16384; DB = 32768; MLA = 49152; MLB = 49408; CNT = 49664; QL = 49920
LDS_BYTES = 98304
CSCALE = (128 ** -0.5) * 1.4426950408889634
TAGINC = 0x9E3779B9
NEG = -1.0e30

S_WG = "s2"; S_WAVE = "s3"
SRD_KA = "s[8:11]"; SRD_VA = "s[12:15]"; SRD_KB = "s[16:19]"; SRD_VB = "s[20:23]"
SRD_WS = "s[24:27]"; SRD_WQ = "s[28:31]"; SRD_X = "s[32:35]"; SRD_WO = "s[36:39]"; SRD_OUT = "s[40:43]"
S_TAG = "s44"; S_C = "s45"; S_BBASE = "s46"; S_OFF = "s47"; S_IDX0 = "s48"; S_IDX1 = "s49"
S_T0 = "s50"; S_T1 = "s51"; S_T2 = "s52"; S_T3 = "s53"; S_T4="s54"; S_T5="s55"; S_CNT = "s56"; S_NB="s57"; S_REC="s58"; S_STRIDE="s59"; S_MLD="s60"
S_EX = "s[62:63]"
V_TID = "v0"; V_LANE = "v1"; V_N = "v2"; V_G = "v3"; V_KOFF = "v4"; V_VOFF = "v5"
V_SEL = [6, 7, 8, 9]
V_M = "v10"; V_MC = "v11"; V_L = "v12"; V_CNTADDR = "v13"; V_ONE = "v14"; V_GRAB = "v15"
S0 = 16
O0 = 20
Q0 = 28
P0 = 44
TT = 48
X0 = 50
TM = 58
V_DEP = "v62"; V_TMP = "v63"
SLOT_K = [64, 96]; SLOT_V = [80, 112]
T0 = 128
NVGPR = 192

def build(opt):
    g = Gen(**opt); A = g.A
    stamps = opt.get("stamps", False)
    def stamp(k):
        if not stamps: return
        lb = g.label("st")
        A(f"s_cmp_lg_u32 {S_WAVE}, 0\ns_cbranch_scc1 {lb}")
        A("s_memrealtime s[90:91]\ns_waitcnt lgkmcnt(0)")
        A(f"v_mov_b32 v190, s90\nv_mov_b32 v191, s91\ns_lshl_b32 s92, {S_WG}, 6\ns_add_u32 s92, s92, {ST_OFF + k*8}")
        A(f"s_mov_b64 exec, 1\nbuffer_store_dwordx2 v[190:191], off, {SRD_WS}, s92\ns_mov_b64 exec, -1")
        A(f"{lb}:")

    A(f"s_cmp_ge_u32 {S_WG}, 256\ns_cbranch_scc1 L_end")
    A("s_load_dwordx16 s[64:79], s[0:1], 0")
    A("s_load_dwordx8 s[80:87], s[0:1], 64")
    A("s_load_dwordx2 s[88:89], s[0:1], 96")
    A(f"v_lshrrev_b32 {V_LANE}, 6, {V_TID}")
    A("s_nop 0")
    A(f"v_readfirstlane_b32 {S_WAVE}, {V_LANE}")
    A(f"v_and_b32 {V_LANE}, 63, {V_TID}")
    A(f"v_and_b32 {V_N}, 15, {V_LANE}")
    A(f"v_lshrrev_b32 {V_G}, 4, {V_LANE}")
    A(f"v_lshlrev_b32 {V_KOFF}, 8, {V_N}\nv_lshl_add_u32 {V_KOFF}, {V_G}, 4, {V_KOFF}")
    A(f"v_lshlrev_b32 {V_VOFF}, 10, {V_G}\nv_lshl_add_u32 {V_VOFF}, {V_N}, 4, {V_VOFF}")
    A(f"v_and_b32 {V_TMP}, 3, {V_N}")
    for idx, (n_lo, lo, hi) in enumerate([(0, 0x0c0c0100, 0x01000c0c), (2, 0x0c0c0100, 0x01000c0c), (0, 0x0c0c0302, 0x03020c0c), (2, 0x0c0c0302, 0x03020c0c)]):
        v = f"v{V_SEL[idx]}"
        A(f"v_mov_b32 {v}, 0x0c0c0c0c")
        A(f"v_mov_b32 v{TM}, 0x{lo:08x}\nv_mov_b32 v{TM+1}, 0x{hi:08x}")
        A(f"v_cmp_eq_u32 vcc, {n_lo}, {V_TMP}\ns_nop 1\nv_cndmask_b32 {v}, {v}, v{TM}, vcc")
        A(f"v_cmp_eq_u32 vcc, {n_lo+1}, {V_TMP}\ns_nop 1\nv_cndmask_b32 {v}, {v}, v{TM+1}, vcc")
    A(f"v_lshrrev_b32 {V_DEP}, 2, {V_N}\nv_lshlrev_b32 {V_DEP}, 9, {V_DEP}")
    A(f"v_lshl_add_u32 {V_DEP}, {V_G}, 7, {V_DEP}\nv_lshl_add_u32 {V_DEP}, {V_TMP}, 2, {V_DEP}")
    A(f"s_lshl_b32 {S_T0}, {S_WAVE}, 11\nv_add_u32 {V_DEP}, {S_T0}, {V_DEP}")
    A(f"v_mov_b32 {V_CNTADDR}, {CNT}\nv_mov_b32 {V_ONE}, 1")
    A(f"s_mov_b32 {S_C}, 0x{f2u(CSCALE):08x}")
    A("s_waitcnt lgkmcnt(0)")
    def srd(sr, lo, hi, size):
        b = int(sr[2:sr.index(":")])
        A(f"s_mov_b32 s{b}, {lo}\ns_mov_b32 s{b+1}, {hi}\ns_mov_b32 s{b+2}, 0x{size:x}\ns_mov_b32 s{b+3}, 0x20000")
    srd(SRD_WS, "s88", "s89", 0x1000000)
    A(f"buffer_load_dword v{T0+40}, off, {SRD_WS}, 0 sc0 sc1")
    srd(SRD_KA, "s66", "s67", 0x4000000)
    srd(SRD_VA, "s68", "s69", 0x4000000)
    srd(SRD_KB, "s76", "s77", 0x10000000)
    srd(SRD_VB, "s78", "s79", 0x10000000)
    A(f"s_cmp_lt_u32 {S_WG}, 128")
    A("s_cselect_b32 s28, s70, s80\ns_cselect_b32 s29, s71, s81\ns_mov_b32 s30, 0x400000\ns_mov_b32 s31, 0x20000")
    A("s_cselect_b32 s32, s64, s74\ns_cselect_b32 s33, s65, s75\ns_mov_b32 s34, 0x800\ns_mov_b32 s35, 0x20000")
    A("s_cselect_b32 s36, s72, s82\ns_cselect_b32 s37, s73, s83\ns_mov_b32 s38, 0x400000\ns_mov_b32 s39, 0x20000")
    srd(SRD_OUT, "s84", "s85", 0x1000)
    A(f"v_bfe_u32 v{TM}, {V_N}, 2, 1\nv_lshlrev_b32 v{TM}, 10, v{TM}\nv_lshl_add_u32 v{TM}, {V_G}, 3, v{TM}")
    A(f"s_and_b32 {S_T0}, {S_WG}, 3")
    A(f"s_lshl_b32 {S_T1}, {S_T0}, 8\ns_lshl_b32 {S_T2}, {S_WAVE}, 5\ns_add_u32 {S_T1}, {S_T1}, {S_T2}")
    A(f"buffer_load_dwordx2 v[{TT}:{TT+1}], v{TM}, {SRD_X}, {S_T1} offen")
    A(f"v_lshlrev_b32 v{TM+1}, 15, {V_G}\nv_lshl_add_u32 v{TM+1}, {V_N}, 4, v{TM+1}")
    A(f"s_lshl_b32 {S_T1}, {S_T0}, 20\ns_lshl_b32 {S_T2}, {S_WAVE}, 17\ns_add_u32 {S_T1}, {S_T1}, {S_T2}")
    A(f"s_bfe_u32 {S_T2}, {S_WG}, 0x50002\ns_lshl_b32 {S_T2}, {S_T2}, 8\ns_add_u32 {S_T1}, {S_T1}, {S_T2}")
    for rho in range(4):
        r = T0 + 4*rho
        A(f"buffer_load_dwordx4 v[{r}:{r+3}], v{TM+1}, {SRD_WQ}, {S_T1} offen nt")
        if rho < 3: A(f"s_add_u32 {S_T1}, {S_T1}, 8192")
    A(f"s_lshr_b32 {S_T1}, {S_WG}, 4\ns_lshl_b32 {S_T1}, {S_T1}, 22\ns_add_u32 {S_T1}, {S_T1}, 0x300000")
    A(f"s_and_b32 {S_T2}, {S_WG}, 15\ns_lshl_b32 {S_T2}, {S_T2}, 16\ns_add_u32 {S_T1}, {S_T1}, {S_T2}")
    A(f"s_lshl_b32 {S_T2}, {S_WAVE}, 12\ns_add_u32 {S_T1}, {S_T1}, {S_T2}")
    def issueK(slot, srdk, soff):
        for j in range(4):
            r = SLOT_K[slot] + 4*j
            A(f"buffer_load_dwordx4 v[{r}:{r+3}], {V_KOFF}, {srdk}, {soff} offen offset:{j*64} nt")
    def issueV(slot, srdv, soff):
        for j in range(4):
            r = SLOT_V[slot] + 4*j
            A(f"buffer_load_dwordx4 v[{r}:{r+3}], {V_VOFF}, {srdv}, {soff} offen offset:{j*256} nt")
    issueK(0, SRD_KA, S_T1); issueV(0, SRD_VA, S_T1)
    A(f"s_add_u32 {S_T1}, {S_T1}, 0x8000")
    issueK(1, SRD_KA, S_T1); issueV(1, SRD_VA, S_T1)
    A(f"s_lshr_b32 {S_BBASE}, {S_WG}, 2\ns_lshl_b32 {S_BBASE}, {S_BBASE}, 22")
    A(f"s_and_b32 {S_T2}, {S_WG}, 3\ns_lshl_b32 {S_T2}, {S_T2}, 20\ns_add_u32 {S_BBASE}, {S_BBASE}, {S_T2}")
    lb = g.label("zc")
    A(f"s_cmp_lg_u32 {S_WAVE}, 0\ns_cbranch_scc1 {lb}")
    A(f"v_mov_b32 v{TM+2}, 0\nv_mov_b32 v{TM+3}, 0")
    A(f"s_mov_b64 exec, 1\nds_write_b64 {V_CNTADDR}, v[{TM+2}:{TM+3}]\nds_write_b32 {V_CNTADDR}, v{TM+2} offset:8\ns_mov_b64 exec, -1")
    A(f"{lb}:")
    stamp(0)
    for i in range(8): A(f"v_mov_b32 v{O0+i}, 0")
    A("s_waitcnt vmcnt(16)")
    A(f"v_readfirstlane_b32 {S_TAG}, v{T0+40}")
    def diag_mfma(abase, nop_first=True):
        for rho in range(4):
            src = TT + (rho >> 1); hi = rho & 1
            A(f"v_perm_b32 v{X0+2*rho}, v{src}, v{src}, v{V_SEL[0+2*hi]}")
            A(f"v_perm_b32 v{X0+2*rho+1}, v{src}, v{src}, v{V_SEL[1+2*hi]}")
    def pv_mfma(abase):
        for rho in range(4):
            for u in range(2):
                a = abase + 4*rho + 2*u
                A(f"v_mfma_f32_16x16x16_bf16 v[{O0+4*u}:{O0+4*u+3}], v[{a}:{a+1}], v[{X0+2*rho}:{X0+2*rho+1}], v[{O0+4*u}:{O0+4*u+3}]")
    diag_mfma(T0)
    A(f"s_add_u32 {S_TAG}, {S_TAG}, 0x{TAGINC:08x}")
    A("s_nop 0")
    pv_mfma(T0)
    A("s_nop 7\ns_nop 1")
    def deposit(area):
        for u in range(2):
            for rp in range(4):
                A(f"ds_write_b32 {V_DEP}, v{O0+4*u+rp} offset:{area + rp*32 + u*16}")
    deposit(DQ)
    A("s_waitcnt lgkmcnt(0)\ns_barrier")
    lb = g.label("qs")
    A(f"s_cmp_ge_u32 {S_WAVE}, 4\ns_cbranch_scc1 {lb}")
    A(f"v_lshlrev_b32 v{TM}, 2, {V_TID}")
    for k in range(8): A(f"ds_read_b32 v{T0+k}, v{TM} offset:{DQ + k*2048}")
    A("s_waitcnt lgkmcnt(0)")
    A(f"v_add_f32 v{T0}, v{T0}, v{T0+1}\nv_add_f32 v{T0+2}, v{T0+2}, v{T0+3}\nv_add_f32 v{T0+4}, v{T0+4}, v{T0+5}\nv_add_f32 v{T0+6}, v{T0+6}, v{T0+7}")
    A(f"v_add_f32 v{T0}, v{T0}, v{T0+2}\nv_add_f32 v{T0+4}, v{T0+4}, v{T0+6}\nv_add_f32 v{T0}, v{T0}, v{T0+4}")
    A(f"v_mov_b32 v{T0+1}, {S_TAG}")
    A(f"v_lshlrev_b32 v{TM}, 3, {V_TID}")
    A(f"s_lshl_b32 {S_T1}, {S_WG}, 11\ns_add_u32 {S_T1}, {S_T1}, {QP_OFF}")
    A(f"buffer_store_dwordx2 v[{T0}:{T0+1}], v{TM}, {SRD_WS}, {S_T1} offen sc0 sc1")
    A(f"{lb}:")
    stamp(1)
    def poll(loads, tagregs, first_mask, name, sleep=1):
        for stage in range(2):
            l_top = g.label(name); l_ok = g.label(name + "ok")
            A(f"s_mov_b32 {S_CNT}, 0")
            if stage == 0: A(f"s_mov_b64 exec, 0x{first_mask:x}")
            A(f"{l_top}:")
            for s in loads: A(s)
            A("s_waitcnt vmcnt(0)")
            acc = V_TMP
            A(f"v_xor_b32 {acc}, {S_TAG}, v{tagregs[0]}")
            for t in tagregs[1:]:
                A(f"v_xor_b32 v{t}, {S_TAG}, v{t}\nv_or_b32 {acc}, {acc}, v{t}")
            A(f"v_cmp_ne_u32 vcc, 0, {acc}")
            A(f"s_cbranch_vccz {l_ok}")
            A(f"s_add_u32 {S_CNT}, {S_CNT}, 1\ns_cmp_lt_u32 {S_CNT}, 0x40000\ns_cbranch_scc0 {l_ok}")
            A(f"s_sleep {sleep}\ns_branch {l_top}")
            A(f"{l_ok}:")
            if stage == 0: A("s_mov_b64 exec, -1")
    A(f"v_lshrrev_b32 v{TM}, 7, {V_TID}\nv_lshlrev_b32 v{TM}, 13, v{TM}")
    A(f"v_and_b32 v{TM+1}, 127, {V_TID}\nv_lshl_add_u32 v{TM}, v{TM+1}, 3, v{TM}")
    A(f"s_bfe_u32 {S_T1}, {S_WG}, 0x30004\ns_lshl_b32 {S_T1}, {S_T1}, 15")
    A(f"s_lshr_b32 {S_T2}, {S_WG}, 7\ns_lshl_b32 {S_T2}, {S_T2}, 10\ns_add_u32 {S_T1}, {S_T1}, {S_T2}")
    A(f"s_add_u32 {S_T1}, {S_T1}, {QP_OFF}\ns_add_u32 {S_T2}, {S_T1}, 4096")
    loads = [f"buffer_load_dwordx2 v[{T0+2*dq}:{T0+2*dq+1}], v{TM}, {SRD_WS}, {S_T1 if dq<2 else S_T2} offen offset:{(dq&1)*2048} sc0 sc1" for dq in range(4)]
    poll(loads, [T0+1, T0+3, T0+5, T0+7], 1, "qa", sleep=4)
    A(f"v_add_f32 v{T0}, v{T0}, v{T0+2}\nv_add_f32 v{T0+4}, v{T0+4}, v{T0+6}\nv_add_f32 v{T0}, v{T0}, v{T0+4}")
    A(f"v_cvt_pk_bf16_f32 v{T0}, v{T0}, v{T0}")
    A(f"v_lshlrev_b32 v{TM+2}, 1, {V_TID}")
    A(f"ds_write_b16 v{TM+2}, v{T0} offset:{QL}")
    lb = g.label("qb")
    A(f"s_cmp_ge_u32 {S_WAVE}, 2\ns_cbranch_scc1 {lb}")
    A(f"v_lshlrev_b32 v{TM}, 3, {V_TID}")
    A(f"s_bfe_u32 {S_T1}, {S_WG}, 0x50002\ns_lshl_b32 {S_T1}, {S_T1}, 13")
    A(f"s_lshr_b32 {S_T2}, {S_WG}, 7\ns_lshl_b32 {S_T2}, {S_T2}, 10\ns_add_u32 {S_T1}, {S_T1}, {S_T2}")
    A(f"s_add_u32 {S_T1}, {S_T1}, {QP_OFF + 128*2048}\ns_add_u32 {S_T2}, {S_T1}, 4096")
    poll(loads, [T0+1, T0+3, T0+5, T0+7], 1, "qb", sleep=4)
    A(f"v_add_f32 v{T0}, v{T0}, v{T0+2}\nv_add_f32 v{T0+4}, v{T0+4}, v{T0+6}\nv_add_f32 v{T0}, v{T0}, v{T0+4}")
    A(f"v_cvt_pk_bf16_f32 v{T0}, v{T0}, v{T0}")
    A(f"v_lshlrev_b32 v{TM+2}, 1, {V_TID}")
    A(f"ds_write_b16 v{TM+2}, v{T0} offset:{QL + 1024}")
    A(f"{lb}:")
    A("s_waitcnt lgkmcnt(0)\ns_barrier")
    stamp(2)
    A(f"v_lshrrev_b32 v{TM}, 2, {V_N}\nv_lshlrev_b32 v{TM}, 8, v{TM}\nv_lshl_add_u32 v{TM}, {V_G}, 4, v{TM}")
    for j in range(4): A(f"ds_read_b128 v[{Q0+4*j}:{Q0+4*j+3}], v{TM} offset:{QL + j*64}")
    def reset_acc():
        A(f"v_mov_b32 {V_M}, 0x{f2u(NEG):08x}\nv_mov_b32 {V_MC}, 0x{f2u(NEG):08x}\nv_mov_b32 {V_L}, 0")
        for i in range(8): A(f"v_mov_b32 v{O0+i}, 0")
    reset_acc()
    A("s_waitcnt lgkmcnt(0)")

    def compute(slot, sidx):
        K = SLOT_K[slot]; V = SLOT_V[slot]
        A(f"s_mov_b64 exec, 1\nds_add_rtn_u32 {V_GRAB}, {V_CNTADDR}, {V_ONE}\ns_mov_b64 exec, -1")
        A("s_waitcnt vmcnt(12)")
        for j in range(4):
            c = "0" if j == 0 else f"v[{S0}:{S0+3}]"
            A(f"v_mfma_f32_16x16x32_bf16 v[{S0}:{S0+3}], v[{K+4*j}:{K+4*j+3}], v[{Q0+4*j}:{Q0+4*j+3}], {c}")
        A("s_waitcnt lgkmcnt(0)")
        A(f"v_readfirstlane_b32 {sidx}, {V_GRAB}")
        A("s_nop 3")
        A(f"s_lshl_b32 {S_T0}, {sidx}, 3\ns_lshr_b32 {S_T1}, {sidx}, 5\ns_or_b32 {S_T0}, {S_T0}, {S_T1}\ns_and_b32 {S_T0}, {S_T0}, 255")
        A(f"s_lshl_b32 {S_T0}, {S_T0}, 12\ns_add_u32 {S_OFF}, {S_BBASE}, {S_T0}")
        A(f"s_cmp_ge_u32 {sidx}, 256\ns_cselect_b32 {S_OFF}, 0x7ff00000, {S_OFF}")
        issueK(slot, SRD_KB, S_OFF)
        A(f"v_max3_f32 v{TM}, v{S0}, v{S0+1}, v{S0+2}\nv_max_f32 v{TM}, v{TM}, v{S0+3}")
        A(f"v_cmp_gt_f32 vcc, v{TM}, {V_M}")
        lf = g.label("fast")
        A(f"s_cbranch_vccz {lf}")
        A(f"v_mov_b32 v{TM+1}, v{TM}\ns_nop 1\nv_permlane32_swap_b32 v{TM+1}, v{TM}\ns_nop 1\nv_max_f32 v{TM}, v{TM}, v{TM+1}")
        A(f"v_mov_b32 v{TM+1}, v{TM}\ns_nop 1\nv_permlane16_swap_b32 v{TM+1}, v{TM}\ns_nop 1\nv_max_f32 v{TM}, v{TM}, v{TM+1}")
        A(f"v_max_f32 {V_M}, {V_M}, v{TM}")
        A(f"v_mul_f32 v{TM+1}, {S_C}, {V_M}")
        A(f"v_sub_f32 v{TM+2}, {V_MC}, v{TM+1}")
        A(f"v_exp_f32 v{TM+2}, v{TM+2}")
        A(f"v_mov_b32 {V_MC}, v{TM+1}")
        A(f"v_mul_f32 {V_L}, {V_L}, v{TM+2}")
        for i in range(8): A(f"v_mul_f32 v{O0+i}, v{O0+i}, v{TM+2}")
        A(f"{lf}:")
        for i in range(4): A(f"v_fma_f32 v{P0+i}, v{S0+i}, {S_C}, -{V_MC}")
        for i in range(4): A(f"v_exp_f32 v{P0+i}, v{P0+i}")
        A("s_nop 0")
        A(f"v_cvt_pk_bf16_f32 v{TT}, v{P0}, v{P0+1}\nv_cvt_pk_bf16_f32 v{TT+1}, v{P0+2}, v{P0+3}")
        A(f"v_add_f32 v{P0}, v{P0}, v{P0+1}\nv_add_f32 v{P0+2}, v{P0+2}, v{P0+3}")
        diag_mfma(V)
        A(f"v_add_f32 {V_L}, {V_L}, v{P0}\nv_add_f32 {V_L}, {V_L}, v{P0+2}")
        A("s_waitcnt vmcnt(12)")
        pv_mfma(V)
        issueV(slot, SRD_VB, S_OFF)

    def flush(area, mlarea, cntoff, isA):
        A(f"v_mov_b32 v{TM+1}, {V_L}\ns_nop 1\nv_permlane32_swap_b32 v{TM+1}, {V_L}\ns_nop 1\nv_add_f32 {V_L}, {V_L}, v{TM+1}")
        A(f"v_mov_b32 v{TM+1}, {V_L}\ns_nop 1\nv_permlane16_swap_b32 v{TM+1}, {V_L}\ns_nop 1\nv_add_f32 {V_L}, {V_L}, v{TM+1}")
        A("s_nop 7")
        deposit(area)
        A(f"v_lshrrev_b32 v{TM}, 2, {V_N}\nv_lshlrev_b32 v{TM}, 3, v{TM}\ns_lshl_b32 {S_T0}, {S_WAVE}, 5\nv_add_u32 v{TM}, {S_T0}, v{TM}")
        A(f"v_mov_b32 v{TM+2}, {V_MC}\nv_mov_b32 v{TM+3}, {V_L}")
        A(f"ds_write_b64 v{TM}, v[{TM+2}:{TM+3}] offset:{mlarea}")
        A("s_waitcnt lgkmcnt(0)")
        A(f"s_mov_b64 exec, 1\nds_add_rtn_u32 v{TM}, {V_CNTADDR}, {V_ONE} offset:{cntoff}\ns_mov_b64 exec, -1")
        A("s_waitcnt lgkmcnt(0)")
        A(f"v_readfirstlane_b32 {S_T0}, v{TM}")
        lb = g.label("nomerge")
        A("s_nop 3")
        A(f"s_cmp_lg_u32 {S_T0}, 7\ns_cbranch_scc1 {lb}")
        A(f"v_lshlrev_b32 v{TM}, 3, {V_G}")
        for k in range(8): A(f"ds_read_b64 v[{T0+2*k}:{T0+2*k+1}], v{TM} offset:{mlarea + k*32}")
        A(f"v_lshlrev_b32 v{TM+1}, 9, {V_G}\nv_lshl_add_u32 v{TM+1}, {V_N}, 5, v{TM+1}")
        OB = T0 + 24
        for k in range(4):
            A(f"ds_read_b128 v[{OB+8*k}:{OB+8*k+3}], v{TM+1} offset:{area + k*2048}")
            A(f"ds_read_b128 v[{OB+8*k+4}:{OB+8*k+7}], v{TM+1} offset:{area + k*2048 + 16}")
        A("s_waitcnt lgkmcnt(8)")
        M = T0 + 16; Ls = T0 + 17
        A(f"v_max3_f32 v{M}, v{T0}, v{T0+2}, v{T0+4}\nv_max3_f32 v{M}, v{M}, v{T0+6}, v{T0+8}\nv_max3_f32 v{M}, v{M}, v{T0+10}, v{T0+12}\nv_max_f32 v{M}, v{M}, v{T0+14}")
        for k in range(8):
            A(f"v_sub_f32 v{T0+2*k}, v{T0+2*k}, v{M}")
        for k in range(8):
            A(f"v_exp_f32 v{T0+2*k}, v{T0+2*k}")
        A("s_nop 0")
        A(f"v_mul_f32 v{Ls}, v{T0}, v{T0+1}")
        for k in range(1, 8): A(f"v_fmac_f32 v{Ls}, v{T0+2*k}, v{T0+2*k+1}")
        ACC = T0 + 56
        A("s_waitcnt lgkmcnt(0)")
        for i in range(8): A(f"v_mul_f32 v{ACC+i}, v{T0}, v{OB+i}")
        for k in range(1, 4):
            for i in range(8): A(f"v_fmac_f32 v{ACC+i}, v{T0+2*k}, v{OB+8*k+i}")
        for k in range(4):
            A(f"ds_read_b128 v[{OB+8*k}:{OB+8*k+3}], v{TM+1} offset:{area + (k+4)*2048}")
            A(f"ds_read_b128 v[{OB+8*k+4}:{OB+8*k+7}], v{TM+1} offset:{area + (k+4)*2048 + 16}")
        A("s_waitcnt lgkmcnt(0)")
        for k in range(4):
            for i in range(8): A(f"v_fmac_f32 v{ACC+i}, v{T0+2*(k+4)}, v{OB+8*k+i}")
        for i in range(8):
            A(f"v_mov_b32 v{OB+2*i}, v{ACC+i}\nv_mov_b32 v{OB+2*i+1}, {S_TAG}")
        A(f"v_mov_b32 v{OB+16}, v{M}\nv_mov_b32 v{OB+17}, {S_TAG}\nv_mov_b32 v{OB+18}, v{Ls}\nv_mov_b32 v{OB+19}, {S_TAG}")
        if isA:
            A(f"s_mul_i32 {S_T0}, {S_WG}, {4*REC}\ns_add_u32 {S_T0}, {S_T0}, {RA_OFF}")
            A(f"v_mul_u32_u24 v{TM}, {REC}, {V_G}")
        else:
            A(f"s_mul_i32 {S_T0}, {S_WG}, {REC}\ns_add_u32 {S_T0}, {S_T0}, {RB_OFF}")
            A(f"v_mov_b32 v{TM}, 0")
            A("s_mov_b64 exec, 0xffff")
        A(f"v_lshl_add_u32 v{TM+1}, {V_N}, 6, v{TM}")
        for i in range(4):
            A(f"buffer_store_dwordx4 v[{OB+4*i}:{OB+4*i+3}], v{TM+1}, {SRD_WS}, {S_T0} offen offset:{i*16} sc0 sc1")
        A(f"v_cmp_eq_u32 vcc, 0, {V_N}\ns_nop 1\ns_and_b64 exec, exec, vcc")
        A(f"buffer_store_dwordx4 v[{OB+16}:{OB+19}], v{TM}, {SRD_WS}, {S_T0} offen offset:1024 sc0 sc1")
        A("s_mov_b64 exec, -1")
        A(f"{lb}:")

    compute(0, S_IDX0)
    compute(1, S_IDX1)
    flush(DA, MLA, 4, True)
    reset_acc()
    A(f"v_lshlrev_b32 v{TM}, 4, {V_G}")
    for j in range(4): A(f"ds_read_b128 v[{Q0+4*j}:{Q0+4*j+3}], v{TM} offset:{QL + 1024 + j*64}")
    A("s_waitcnt lgkmcnt(0)")
    stamp(3)
    A("L_loop:")
    A(f"s_cmp_ge_u32 {S_IDX0}, 256\ns_cbranch_scc1 L_done")
    compute(0, S_IDX0)
    A(f"s_cmp_ge_u32 {S_IDX1}, 256\ns_cbranch_scc1 L_done")
    compute(1, S_IDX1)
    A("s_branch L_loop")
    A("L_done:")
    stamp(4)
    WO = SLOT_K[0]
    A(f"v_lshlrev_b32 v{TM}, 12, {V_G}\nv_lshl_add_u32 v{TM}, {V_N}, 4, v{TM}")
    A(f"s_bfe_u32 {S_T0}, {S_WG}, 0x50002\ns_lshl_b32 {S_T0}, {S_T0}, 17\ns_lshl_b32 {S_T1}, {S_WAVE}, 14\ns_add_u32 {S_T0}, {S_T0}, {S_T1}")
    A(f"s_and_b32 {S_T1}, {S_WG}, 3\ns_lshl_b32 {S_T1}, {S_T1}, 8\ns_add_u32 {S_T0}, {S_T0}, {S_T1}")
    for rho in range(4):
        A(f"buffer_load_dwordx4 v[{WO+4*rho}:{WO+4*rho+3}], v{TM}, {SRD_WO}, {S_T0} offen offset:{rho*1024} nt")
    flush(DB, MLB, 8, False)
    stamp(5)
    A(f"s_bfe_u32 {S_T0}, {S_WG}, 0x50002")
    lbB = g.label("ownB"); lbJ = g.label("ownJ")
    A(f"s_cmp_ge_u32 {S_WG}, 128\ns_cbranch_scc1 {lbB}")
    A(f"s_lshr_b32 {S_T1}, {S_T0}, 2\ns_lshl_b32 {S_T1}, {S_T1}, 6\ns_and_b32 {S_T2}, {S_T0}, 3\ns_add_u32 {S_T1}, {S_T1}, {S_T2}")
    A(f"s_mul_i32 {S_REC}, {S_T1}, {REC}\ns_add_u32 {S_REC}, {S_REC}, {RA_OFF}")
    A(f"s_mov_b32 {S_STRIDE}, {4*REC}\ns_mov_b32 {S_NB}, 4\ns_mov_b32 {S_T3}, {8*16*4*REC}")
    A(f"s_branch {lbJ}")
    A(f"{lbB}:")
    A(f"s_mul_i32 {S_REC}, {S_T0}, {4*REC}\ns_add_u32 {S_REC}, {S_REC}, {RB_OFF}")
    A(f"s_mov_b32 {S_STRIDE}, {REC}\ns_mov_b32 {S_NB}, 1\ns_mov_b32 {S_T3}, {32*4*REC}")
    A(f"{lbJ}:")
    A(f"v_bfe_u32 v{TM}, {V_N}, 2, 1\nv_mul_lo_u32 v{TM}, v{TM}, {S_T3}")
    A(f"v_lshl_add_u32 v{TM+1}, {V_G}, 5, v{TM}")
    A(f"s_lshl_b32 {S_T1}, {S_WAVE}, 7")
    A(f"s_sub_u32 {S_MLD}, 1024, {S_T1}")
    A(f"s_add_u32 {S_REC}, {S_REC}, {S_T1}")
    RM = P0; RL = P0 + 1; RO = S0
    A(f"v_mov_b32 v{RM}, 0x{f2u(NEG):08x}\nv_mov_b32 v{RL}, 0")
    for i in range(4): A(f"v_mov_b32 v{RO+i}, 0")
    A("L_batch:")
    for s in range(4):
        if s == 0: A(f"s_mov_b32 s92, {S_REC}")
        else: A(f"s_add_u32 s{92+2*s}, s{90+2*s}, {S_STRIDE}")
        A(f"s_add_u32 s{93+2*s}, s{92+2*s}, {S_MLD}")
    loads = []
    tags = []
    for s in range(4):
        b = T0 + 12*s
        loads.append(f"buffer_load_dwordx4 v[{b}:{b+3}], v{TM+1}, {SRD_WS}, s{92+2*s} offen sc0 sc1")
        loads.append(f"buffer_load_dwordx4 v[{b+4}:{b+7}], v{TM+1}, {SRD_WS}, s{92+2*s} offen offset:16 sc0 sc1")
        loads.append(f"buffer_load_dwordx4 v[{b+8}:{b+11}], v{TM}, {SRD_WS}, s{93+2*s} offen sc0 sc1")
        tags += [b+1, b+3, b+5, b+7, b+9, b+11]
    poll(loads, tags, 0x11, "rec", sleep=1)
    MB = T0 + 48
    A(f"v_max3_f32 v{MB}, v{T0+8}, v{T0+20}, v{T0+32}\nv_max3_f32 v{MB}, v{MB}, v{T0+44}, v{RM}")
    A(f"v_sub_f32 v{RM}, v{RM}, v{MB}")
    for s in range(4): A(f"v_sub_f32 v{T0+12*s+8}, v{T0+12*s+8}, v{MB}")
    A(f"v_exp_f32 v{RM}, v{RM}")
    for s in range(4): A(f"v_exp_f32 v{T0+12*s+8}, v{T0+12*s+8}")
    A("s_nop 0")
    A(f"v_mul_f32 v{RL}, v{RL}, v{RM}")
    for i in range(4): A(f"v_mul_f32 v{RO+i}, v{RO+i}, v{RM}")
    for s in range(4):
        b = T0 + 12*s
        A(f"v_fmac_f32 v{RL}, v{b+8}, v{b+10}")
        for i in range(4): A(f"v_fmac_f32 v{RO+i}, v{b+8}, v{b+2*i}")
    A(f"v_mov_b32 v{RM}, v{MB}")
    A(f"s_lshl_b32 {S_T1}, {S_STRIDE}, 2\ns_add_u32 {S_REC}, {S_REC}, {S_T1}")
    A(f"s_sub_u32 {S_NB}, {S_NB}, 1\ns_cmp_lg_u32 {S_NB}, 0\ns_cbranch_scc1 L_batch")
    A(f"v_rcp_f32 v{RL}, v{RL}")
    A("s_nop 0")
    for i in range(4): A(f"v_mul_f32 v{RO+i}, v{RO+i}, v{RL}")
    A(f"v_cvt_pk_bf16_f32 v{TT}, v{RO}, v{RO+1}\nv_cvt_pk_bf16_f32 v{TT+1}, v{RO+2}, v{RO+3}")
    for i in range(8): A(f"v_mov_b32 v{O0+i}, 0")
    diag_mfma(WO)
    A("s_waitcnt vmcnt(0)")
    pv_mfma(WO)
    A("s_nop 7\ns_nop 1")
    deposit(DQ)
    A("s_waitcnt lgkmcnt(0)\ns_barrier")
    stamp(6)
    lbF = g.label("fin")
    A(f"s_cmp_ge_u32 {S_WAVE}, 4\ns_cbranch_scc1 {lbF}")
    A(f"v_lshlrev_b32 v{TM}, 2, {V_TID}")
    for k in range(8): A(f"ds_read_b32 v{T0+k}, v{TM} offset:{DQ + k*2048}")
    A("s_waitcnt lgkmcnt(0)")
    A(f"v_add_f32 v{T0}, v{T0}, v{T0+1}\nv_add_f32 v{T0+2}, v{T0+2}, v{T0+3}\nv_add_f32 v{T0+4}, v{T0+4}, v{T0+5}\nv_add_f32 v{T0+6}, v{T0+6}, v{T0+7}")
    A(f"v_add_f32 v{T0}, v{T0}, v{T0+2}\nv_add_f32 v{T0+4}, v{T0+4}, v{T0+6}\nv_add_f32 v{T0}, v{T0}, v{T0+4}")
    A(f"v_mov_b32 v{T0+1}, {S_TAG}")
    A(f"v_lshlrev_b32 v{TM}, 3, {V_TID}")
    A(f"s_lshr_b32 {S_T0}, {S_WG}, 7\ns_lshl_b32 {S_T0}, {S_T0}, 2\ns_and_b32 {S_T1}, {S_WG}, 3\ns_add_u32 {S_T0}, {S_T0}, {S_T1}\ns_lshl_b32 {S_T0}, {S_T0}, 16")
    A(f"s_bfe_u32 {S_T1}, {S_WG}, 0x50002\ns_lshl_b32 {S_T1}, {S_T1}, 11\ns_add_u32 {S_T0}, {S_T0}, {S_T1}\ns_add_u32 {S_T0}, {S_T0}, {YP_OFF}")
    A(f"buffer_store_dwordx2 v[{T0}:{T0+1}], v{TM}, {SRD_WS}, {S_T0} offen sc0 sc1")
    A("s_branch L_end")
    A(f"{lbF}:")
    A(f"s_cmp_lg_u32 {S_WAVE}, 4\ns_cbranch_scc1 L_end")
    A(f"v_lshrrev_b32 v{TM}, 1, {V_LANE}\nv_lshlrev_b32 v{TM}, 11, v{TM}\nv_and_b32 v{TM+1}, 1, {V_LANE}\nv_lshl_add_u32 v{TM}, v{TM+1}, 10, v{TM}")
    A(f"s_lshr_b32 {S_T0}, {S_WG}, 7\ns_lshl_b32 {S_T0}, {S_T0}, 2\ns_and_b32 {S_T1}, {S_WG}, 3\ns_add_u32 {S_T0}, {S_T0}, {S_T1}\ns_lshl_b32 {S_T0}, {S_T0}, 16")
    A(f"s_bfe_u32 {S_T1}, {S_WG}, 0x50002\ns_lshl_b32 {S_T1}, {S_T1}, 5\ns_add_u32 {S_T0}, {S_T0}, {S_T1}\ns_add_u32 {S_T0}, {S_T0}, {YP_OFF}")
    l_top = g.label("yp"); l_ok = g.label("ypok")
    A(f"s_mov_b32 {S_CNT}, 0")
    A(f"{l_top}:")
    A(f"buffer_load_dwordx4 v[{T0}:{T0+3}], v{TM}, {SRD_WS}, {S_T0} offen sc0 sc1")
    A(f"buffer_load_dwordx4 v[{T0+4}:{T0+7}], v{TM}, {SRD_WS}, {S_T0} offen offset:16 sc0 sc1")
    A("s_waitcnt vmcnt(0)")
    A(f"v_xor_b32 {V_TMP}, {S_TAG}, v{T0+1}")
    for t in (3, 5, 7): A(f"v_xor_b32 v{T0+t}, {S_TAG}, v{T0+t}\nv_or_b32 {V_TMP}, {V_TMP}, v{T0+t}")
    A(f"v_cmp_ne_u32 vcc, 0, {V_TMP}\ns_cbranch_vccz {l_ok}")
    A(f"s_add_u32 {S_CNT}, {S_CNT}, 1\ns_cmp_lt_u32 {S_CNT}, 0x40000\ns_cbranch_scc0 {l_ok}")
    A(f"s_sleep 1\ns_branch {l_top}")
    A(f"{l_ok}:")
    ys = [T0, T0+2, T0+4, T0+6]
    for rr in (2, 4, 8):
        for y in ys: A(f"v_add_f32_dpp v{y}, v{y}, v{y} row_ror:{rr} row_mask:0xf bank_mask:0xf")
    for sw in ("v_permlane16_swap_b32", "v_permlane32_swap_b32"):
        for y in ys: A(f"v_mov_b32 v{y+1}, v{y}")
        A("s_nop 1")
        for y in ys: A(f"{sw} v{y+1}, v{y}")
        A("s_nop 1")
        for y in ys: A(f"v_add_f32 v{y}, v{y}, v{y+1}")
    A(f"v_cvt_pk_bf16_f32 v{T0+8}, v{T0}, v{T0+2}\nv_cvt_pk_bf16_f32 v{T0+9}, v{T0+4}, v{T0+6}")
    A(f"v_lshlrev_b32 v{TM+1}, 11, v{TM+1}")
    A(f"s_lshr_b32 {S_T0}, {S_WG}, 7\ns_lshl_b32 {S_T0}, {S_T0}, 10\ns_and_b32 {S_T1}, {S_WG}, 3\ns_lshl_b32 {S_T1}, {S_T1}, 8\ns_add_u32 {S_T0}, {S_T0}, {S_T1}")
    A(f"s_bfe_u32 {S_T1}, {S_WG}, 0x50002\ns_lshl_b32 {S_T1}, {S_T1}, 3\ns_add_u32 {S_T0}, {S_T0}, {S_T1}")
    A("s_mov_b64 exec, 3")
    A(f"buffer_store_dwordx2 v[{T0+8}:{T0+9}], v{TM+1}, {SRD_OUT}, {S_T0} offen")
    A(f"s_cmp_lg_u32 {S_WG}, 0\ns_cbranch_scc1 L_fin2")
    A(f"s_mov_b64 exec, 1\nv_mov_b32 v{T0+10}, {S_TAG}")
    A(f"buffer_store_dword v{T0+10}, off, {SRD_WS}, 0 sc0 sc1")
    A("L_fin2:")
    if stamps:
        A("s_memrealtime s[90:91]\ns_waitcnt lgkmcnt(0)")
        A(f"v_mov_b32 v190, s90\nv_mov_b32 v191, s91\ns_lshl_b32 s92, {S_WG}, 6\ns_add_u32 s92, s92, {ST_OFF + 7*8}")
        A(f"s_mov_b64 exec, 1\nbuffer_store_dwordx2 v[190:191], off, {SRD_WS}, s92")
    A("L_end:")
    A("s_endpgm")
    return g.L

HEADER = open("cdna_kernels/" + NAME + ".s.ref").read().split("; Override launch geometry")[0]

def emit(opt, path):
    body = build(opt)
    out = HEADER
    out += "; Override launch geometry by editing the next line (default: block=256,\n"
    out += f"; @launch grid=(256,1,1) block=(512,1,1) lds={LDS_BYTES}\n"
    out += '.amdgcn_target "amdgcn-amd-amdhsa--gfx950"\n.text\n'
    out += f".globl {KN}\n.p2align 8\n.type {KN},@function\n{KN}:\n"
    out += "\n".join(body) + "\n"
    out += f""".section .rodata,"a"
.p2align 6
.amdhsa_kernel {KN}
  .amdhsa_next_free_vgpr {NVGPR}
  .amdhsa_next_free_sgpr 102
  .amdhsa_accum_offset {NVGPR}
  .amdhsa_group_segment_fixed_size 0
  .amdhsa_kernarg_size 104
  .amdhsa_user_sgpr_count 2
  .amdhsa_user_sgpr_kernarg_segment_ptr 1
  .amdhsa_system_sgpr_workgroup_id_x 1
.end_amdhsa_kernel
"""
    open(path, "w").write(out)

if __name__ == "__main__":
    opt = {}
    path = "cdna_kernels/" + NAME + ".s"
    for a in sys.argv[1:]:
        if a.startswith("-o"): path = a[2:]
        elif "=" in a:
            k, v = a.split("="); opt[k] = int(v)
    emit(opt, path)
```

```python
import sys, struct

NAME = "concat_heads__sliding_block_cached__mha_block_cached__decode"
KN = NAME + "_kernel"

def f2u(f): return struct.unpack("<I", struct.pack("<f", f))[0]

class Gen:
    def __init__(self):
        self.L = []; self.lab = 0
    def A(self, s):
        for line in s.split("\n"):
            line = line.strip()
            self.L.append(line if line.endswith(":") else "    " + line)
    def label(self, base):
        self.lab += 1
        return f"L_{base}_{self.lab}"

NW = 4
QP_OFF = 0x1000
PL_OFF = 0x90000
RA_OFF = 0x100000
RB_OFF = 0x300000
YP_OFF = 0x400000
ST_OFF = 0x800000
REC = 1088
MLA = 0; MLB = 256; CNT = 512; CB = 576; QL = 896
DQ = 2304; DY = 2304; DA = DQ + NW*2048; DB = DA + NW*2048
LDS_BYTES = 28672
import os
LDS_BYTES = int(os.environ.get('LDSB', LDS_BYTES))
CSCALE = (128 ** -0.5) * 1.4426950408889634
TAGINC = 0x9E3779B9
NEG = -1.0e30
FLAGS = {0: "", 1: " nt", 2: " sc1 nt", 3: " sc0 sc1 nt", 4: " sc0 nt", 5: " sc1", 6: " sc0 sc1", 7: " sc0"}
INVALID = 0x8000

S_WG = "s2"; S_WAVE = "s3"
S_PBASE = "s5"; S_RET = "s6"; S_POOL = "s7"; S_OWN = "s62"
SRD_KA = "s[8:11]"; SRD_VA = "s[12:15]"; SRD_KB = "s[16:19]"; SRD_VB = "s[20:23]"
SRD_WS = "s[24:27]"; SRD_WQ = "s[28:31]"; SRD_X = "s[32:35]"; SRD_WO = "s[36:39]"; SRD_OUT = "s[40:43]"
S_TAG = "s44"; S_C = "s45"; S_BBASE = "s46"; S_OFF = "s47"
S_T0 = "s50"; S_T1 = "s51"; S_T2 = "s52"; S_T3 = "s53"; S_T4 = "s54"; S_T5 = "s55"
S_CNT = "s56"; S_REC = "s58"; S_THR = "s61"
S_IDX = ["s48", "s49", "s4", "s57", "s59", "s60", "s61", "s58"]
V_TID = "v0"; V_LANE = "v1"; V_N = "v2"; V_G = "v3"; V_KOFF = "v4"; V_VOFF = "v5"
V_SEL = [6, 7, 8, 9]
V_M = "v10"; V_MC = "v11"; V_L = "v12"; V_CNTADDR = "v13"; V_ONE = "v14"; V_GRAB = "v15"
S0 = 16; O0 = 20; Q0 = 28; P0 = 44; TT = 48; X0 = 50; TM = 58
V_DEP = "v62"; V_TMP = "v63"
T0 = 64
NARCH = 208

def build(opt):
    g = Gen(); A = g.A
    stamps = opt.get("stamps", 0)
    NS = opt.get("ns", 4)
    W = 8*(NS-1) + 4
    POOL = opt.get("pool", 0)
    NSTAT = opt.get("nstat", 224) if POOL else 256
    CH = opt.get("ch", 4); LCH = {4: 2, 8: 3}[CH]
    PCH = (256 - NSTAT) * 4 // CH
    PQ = 256 - NSTAT
    slotK = lambda s: 32*s
    slotV = lambda s: 32*s + 16
    def stamp(k, wave=0):
        if not stamps: return
        lb = g.label("st")
        A(f"s_cmp_lg_u32 {S_WAVE}, {wave}\ns_cbranch_scc1 {lb}")
        stamp_now(k)
        A(f"{lb}:")
    def stamp_now(k):
        A("s_memrealtime s[90:91]\ns_waitcnt lgkmcnt(0)")
        A(f"v_mov_b32 v158, s90\nv_mov_b32 v159, s91\ns_lshl_b32 s100, {S_WG}, 6\ns_add_u32 s100, s100, {ST_OFF + k*8}")
        A(f"s_mov_b64 s[90:91], exec\ns_mov_b64 exec, 1\nbuffer_store_dwordx2 v[158:159], off, {SRD_WS}, s100\ns_mov_b64 exec, s[90:91]")

    A(f"s_cmp_ge_u32 {S_WG}, 256\ns_cbranch_scc1 L_end")
    if stamps: A("s_memrealtime s[96:97]")
    A("s_load_dwordx16 s[64:79], s[0:1], 0")
    A("s_load_dwordx8 s[80:87], s[0:1], 64")
    A("s_load_dwordx2 s[88:89], s[0:1], 96")
    A(f"v_lshrrev_b32 {V_LANE}, 6, {V_TID}")
    A("s_nop 0")
    A(f"v_readfirstlane_b32 {S_WAVE}, {V_LANE}")
    A(f"v_and_b32 {V_LANE}, 63, {V_TID}")
    A(f"v_and_b32 {V_N}, 15, {V_LANE}")
    A(f"v_lshrrev_b32 {V_G}, 4, {V_LANE}")
    A(f"v_bfe_u32 v{TM}, {V_N}, 2, 1\nv_lshlrev_b32 v{TM}, 10, v{TM}\nv_lshl_add_u32 v{TM}, {V_G}, 3, v{TM}")
    A(f"v_lshlrev_b32 v{TM+1}, 15, {V_G}\nv_lshl_add_u32 v{TM+1}, {V_N}, 4, v{TM+1}")
    A(f"v_lshlrev_b32 {V_KOFF}, 8, {V_N}\nv_lshl_add_u32 {V_KOFF}, {V_G}, 4, {V_KOFF}")
    A(f"v_lshlrev_b32 {V_VOFF}, 10, {V_G}\nv_lshl_add_u32 {V_VOFF}, {V_N}, 4, {V_VOFF}")
    A(f"s_and_b32 {S_T0}, {S_WG}, 3")
    A(f"s_lshl_b32 {S_T1}, {S_T0}, 8\ns_lshl_b32 {S_T2}, {S_WAVE}, 6\ns_add_u32 {S_T3}, {S_T1}, {S_T2}")
    A(f"s_lshl_b32 {S_T1}, {S_T0}, 20\ns_lshl_b32 {S_T2}, {S_WAVE}, 18\ns_add_u32 {S_T1}, {S_T1}, {S_T2}")
    A(f"s_bfe_u32 {S_T2}, {S_WG}, 0x50002\ns_lshl_b32 {S_T2}, {S_T2}, 8\ns_add_u32 {S_T1}, {S_T1}, {S_T2}")
    A(f"v_mov_b32 v{TM+2}, 0")
    A(f"s_and_b32 {S_OWN}, {S_WG}, 1\ns_lshl_b32 {S_OWN}, {S_OWN}, 7\ns_lshr_b32 {S_T2}, {S_WG}, 1\ns_or_b32 {S_OWN}, {S_OWN}, {S_T2}")
    A("s_waitcnt lgkmcnt(0)")
    if stamps and opt.get("early", 0) == 1: A("s_memrealtime s[98:99]")
    def srd(sr, lo, hi, size):
        b = int(sr[2:sr.index(":")])
        A(f"s_mov_b32 s{b}, {lo}\ns_mov_b32 s{b+1}, {hi}\ns_mov_b32 s{b+2}, 0x{size:x}\ns_mov_b32 s{b+3}, 0x20000")
    A(f"s_cmp_lt_u32 {S_WG}, 128")
    A("s_cselect_b32 s28, s70, s80\ns_cselect_b32 s29, s71, s81\ns_mov_b32 s30, 0x400000\ns_mov_b32 s31, 0x20000")
    A("s_cselect_b32 s32, s64, s74\ns_cselect_b32 s33, s65, s75\ns_mov_b32 s34, 0x800\ns_mov_b32 s35, 0x20000")
    if opt.get("fakeW", 0) & 1:
        A(f"v_lshlrev_b32 v{TM+1}, 4, {V_LANE}\ns_and_b32 {S_T1}, {S_WG}, 127\ns_lshl_b32 {S_T1}, {S_T1}, 15\ns_lshl_b32 {S_T2}, {S_WAVE}, 13\ns_add_u32 {S_T1}, {S_T1}, {S_T2}")
    for t in range(2):
        for rho in range(4):
            r = T0 + 16*t + 4*rho
            A(f"buffer_load_dwordx4 v[{r}:{r+3}], v{TM+1}, {SRD_WQ}, {S_T1} offen nt")
            if opt.get("fakeW", 0) & 1: A(f"s_add_u32 {S_T1}, {S_T1}, 1024")
            elif rho < 3: A(f"s_add_u32 {S_T1}, {S_T1}, 8192")
            elif t == 0: A(f"s_add_u32 {S_T1}, {S_T1}, {13*8192}")
    XR = T0 + 32
    A(f"buffer_load_dwordx2 v[{XR}:{XR+1}], v{TM}, {SRD_X}, {S_T3} offen")
    A(f"buffer_load_dwordx2 v[{XR+2}:{XR+3}], v{TM}, {SRD_X}, {S_T3} offen offset:32")
    srd(SRD_WS, "s88", "s89", 0x1000000)
    A(f"buffer_load_dword v{T0+40}, off, {SRD_WS}, 0 sc0 sc1")
    if POOL:
        lb = g.label("pz")
        A(f"s_and_b32 {S_T2}, {S_WG}, 0x83\ns_cmp_lg_u32 {S_T2}, 0x80\ns_cbranch_scc1 {lb}")
        A(f"s_cmp_lg_u32 {S_WAVE}, 0\ns_cbranch_scc1 {lb}")
        A(f"s_bfe_u32 {S_T2}, {S_WG}, 0x50002\ns_lshl_b32 {S_T2}, {S_T2}, 7\ns_add_u32 {S_T2}, {S_T2}, {PL_OFF}")
        A(f"s_mov_b64 exec, 1\nbuffer_store_dword v{TM+2}, off, {SRD_WS}, {S_T2} sc0 sc1\ns_add_u32 {S_T2}, {S_T2}, 4096\nbuffer_store_dword v{TM+2}, off, {SRD_WS}, {S_T2} sc0 sc1\ns_mov_b64 exec, -1")
        A(f"{lb}:")
    if opt.get("fakeA", 0):
        srd(SRD_KA, "s76", "s77", 0x10000000)
        srd(SRD_VA, "s78", "s79", 0x10000000)
    else:
        srd(SRD_KA, "s66", "s67", 0x4000000)
        srd(SRD_VA, "s68", "s69", 0x4000000)
    if stamps and opt.get("early", 0) == 2: A("s_memrealtime s[98:99]")
    A("s_barrier")
    if stamps and opt.get("early", 0) == 3: A("s_memrealtime s[98:99]")
    A(f"s_lshr_b32 {S_T1}, {S_WG}, 4\ns_lshl_b32 {S_T1}, {S_T1}, 22\ns_add_u32 {S_T1}, {S_T1}, 0x300000")
    A(f"s_and_b32 {S_T2}, {S_WG}, 15\ns_lshl_b32 {S_T2}, {S_T2}, 16\ns_add_u32 {S_T1}, {S_T1}, {S_T2}")
    if opt.get("fakeA", 0):
        A(f"s_lshl_b32 {S_T1}, {S_WG}, 20\ns_add_u32 {S_T1}, {S_T1}, 0xF0000")
    A(f"s_lshl_b32 {S_T2}, {S_WAVE}, 12\ns_add_u32 {S_REC}, {S_T1}, {S_T2}")
    def issueK(slot, srdk, soff):
        for j in range(4):
            r = slotK(slot) + 4*j
            fl = FLAGS[opt.get("kfl", 1)] if srdk == SRD_KB else FLAGS[opt.get("afl", 1)]
            A(f"buffer_load_dwordx4 a[{r}:{r+3}], {V_KOFF}, {srdk}, {soff} offen offset:{j*64}{fl}")
    def issueV(slot, srdv, soff):
        for j in range(4):
            r = slotV(slot) + 4*j
            fl = FLAGS[opt.get("vfl", 1)] if srdv == SRD_VB else FLAGS[opt.get("afl", 1)]
            A(f"buffer_load_dwordx4 a[{r}:{r+3}], {V_VOFF}, {srdv}, {soff} offen offset:{j*256}{fl}")
    assert NS >= 4
    NPRE = opt.get("npre", 1)
    for s in range(NPRE):
        issueK(s, SRD_KA, S_REC); issueV(s, SRD_VA, S_REC)
        A(f"s_add_u32 {S_REC}, {S_REC}, 0x4000")
    srd(SRD_KB, "s76", "s77", 0x10000000)
    srd(SRD_VB, "s78", "s79", 0x10000000)
    srd(SRD_OUT, "s84", "s85", 0x1000)
    A(f"s_cmp_lt_u32 {S_OWN}, 128")
    A("s_cselect_b32 s36, s72, s82\ns_cselect_b32 s37, s73, s83\ns_mov_b32 s38, 0x400000\ns_mov_b32 s39, 0x20000")
    A(f"v_and_b32 {V_TMP}, 3, {V_N}")
    for idx, (n_lo, lo, hi) in enumerate([(0, 0x0c0c0100, 0x01000c0c), (2, 0x0c0c0100, 0x01000c0c), (0, 0x0c0c0302, 0x03020c0c), (2, 0x0c0c0302, 0x03020c0c)]):
        v = f"v{V_SEL[idx]}"
        A(f"v_mov_b32 {v}, 0x0c0c0c0c")
        A(f"v_mov_b32 v{TM}, 0x{lo:08x}\nv_mov_b32 v{TM+1}, 0x{hi:08x}")
        A(f"v_cmp_eq_u32 vcc, {n_lo}, {V_TMP}\ns_nop 1\nv_cndmask_b32 {v}, {v}, v{TM}, vcc")
        A(f"v_cmp_eq_u32 vcc, {n_lo+1}, {V_TMP}\ns_nop 1\nv_cndmask_b32 {v}, {v}, v{TM+1}, vcc")
    A(f"v_lshrrev_b32 {V_DEP}, 2, {V_N}\nv_lshlrev_b32 {V_DEP}, 9, {V_DEP}")
    A(f"v_lshl_add_u32 {V_DEP}, {V_G}, 7, {V_DEP}\nv_lshl_add_u32 {V_DEP}, {V_TMP}, 2, {V_DEP}")
    A(f"s_lshl_b32 {S_T0}, {S_WAVE}, 11\nv_add_u32 {V_DEP}, {S_T0}, {V_DEP}")
    A(f"v_mov_b32 {V_CNTADDR}, {CNT}\nv_mov_b32 {V_ONE}, 1")
    A(f"s_mov_b32 {S_C}, 0x{f2u(CSCALE):08x}")
    A(f"s_lshr_b32 {S_PBASE}, {S_WG}, 2\ns_lshl_b32 {S_POOL}, {S_PBASE}, 7\ns_add_u32 {S_POOL}, {S_POOL}, {PL_OFF}\ns_lshl_b32 {S_PBASE}, {S_PBASE}, 22")
    A(f"s_and_b32 {S_T2}, {S_WG}, 3\ns_lshl_b32 {S_T2}, {S_T2}, 20\ns_add_u32 {S_BBASE}, {S_PBASE}, {S_T2}")
    A(f"s_lshl_b32 {S_THR}, {S_WAVE}, 4\ns_add_u32 {S_THR}, {S_THR}, {opt.get('athr', 64)}\ns_cmp_lt_u32 {S_OWN}, 128\ns_cselect_b32 {S_THR}, {S_THR}, 0x{INVALID:x}")
    A(f"s_mov_b32 {S_RET}, 0\ns_mov_b32 s63, 0")
    lb = g.label("zc")
    A(f"s_cmp_lg_u32 {S_WAVE}, 0\ns_cbranch_scc1 {lb}")
    A(f"v_mov_b32 v{TM}, {(NS-4)*NW}\nv_mov_b32 v{TM+1}, 0\nv_mov_b32 v{TM+2}, 0\nv_mov_b32 v{TM+3}, 0")
    A(f"v_mov_b32 v{T0+41}, -1\nv_lshlrev_b32 v{T0+42}, 2, {V_LANE}")
    A(f"s_mov_b64 exec, 1\nds_write_b128 {V_CNTADDR}, v[{TM}:{TM+3}]\ns_mov_b64 exec, -1\nds_write_b32 v{T0+42}, v{T0+41} offset:{CB}")
    A(f"{lb}:")
    if stamps and opt.get("entry", 1):
        lb = g.label("st")
        A(f"s_cmp_lg_u32 {S_WAVE}, 0\ns_cbranch_scc1 {lb}")
        A(f"v_mov_b32 v158, s96\nv_mov_b32 v159, s97\ns_lshl_b32 s100, {S_WG}, 6\ns_add_u32 s100, s100, {ST_OFF}")
        A(f"s_mov_b64 exec, 1\nbuffer_store_dwordx2 v[158:159], off, {SRD_WS}, s100\ns_mov_b64 exec, -1")
        if opt.get("early", 0):
            if opt.get("early", 0) == 4: A("s_memrealtime s[98:99]")
            A("s_waitcnt lgkmcnt(0)")
            A(f"v_mov_b32 v156, s98\nv_mov_b32 v157, s99\ns_add_u32 s100, s100, 8")
            A(f"s_mov_b64 exec, 1\nbuffer_store_dwordx2 v[156:157], off, {SRD_WS}, s100\ns_mov_b64 exec, -1")
        A(f"{lb}:")
    else:
        stamp(0)
    for i in range(8): A(f"v_mov_b32 v{O0+i}, 0")
    A(f"s_waitcnt vmcnt({8*NPRE + (8 if opt.get('noq', 0) == 2 else 0)})")
    A(f"v_readfirstlane_b32 {S_TAG}, v{T0+40}")
    def diag(tt=TT):
        for rho in range(4):
            src = tt + (rho >> 1); hi = rho & 1
            A(f"v_perm_b32 v{X0+2*rho}, v{src}, v{src}, v{V_SEL[0+2*hi]}")
            A(f"v_perm_b32 v{X0+2*rho+1}, v{src}, v{src}, v{V_SEL[1+2*hi]}")
    def dmfma(acc, areg):
        for rho in range(4):
            for u in range(2):
                A(f"v_mfma_f32_16x16x16_bf16 v[{acc+4*u}:{acc+4*u+3}], {areg(rho,u)}, v[{X0+2*rho}:{X0+2*rho+1}], v[{acc+4*u}:{acc+4*u+3}]")
    vop = lambda base: (lambda rho, u: f"v[{base+4*rho+2*u}:{base+4*rho+2*u+1}]")
    aop = lambda base: (lambda rho, u: f"a[{base+4*rho+2*u}:{base+4*rho+2*u+1}]")
    diag(XR)
    A(f"s_add_u32 {S_TAG}, {S_TAG}, 0x{TAGINC:08x}")
    A("s_nop 0")
    dmfma(O0, vop(T0))
    A("s_nop 1")
    diag(XR+2)
    A("s_nop 1")
    dmfma(O0, vop(T0+16))
    A("s_nop 7\ns_nop 1")
    def deposit(area, acc=O0):
        for u in range(2):
            for rp in range(4):
                A(f"ds_write_b32 {V_DEP}, v{acc+4*u+rp} offset:{area + rp*32 + u*16}")
    deposit(DQ)
    A("s_waitcnt lgkmcnt(0)\ns_barrier")
    A(f"v_lshlrev_b32 v{TM}, 2, {V_TID}")
    for k in range(NW): A(f"ds_read_b32 v{T0+k}, v{TM} offset:{DQ + k*2048}")
    A("s_waitcnt lgkmcnt(0)")
    A(f"v_add_f32 v{T0}, v{T0}, v{T0+1}\nv_add_f32 v{T0+2}, v{T0+2}, v{T0+3}\nv_add_f32 v{T0}, v{T0}, v{T0+2}")
    A(f"v_mov_b32 v{T0+1}, {S_TAG}")
    A(f"v_lshlrev_b32 v{TM}, 3, {V_TID}")
    A(f"s_lshl_b32 {S_T1}, {S_WG}, 11\ns_add_u32 {S_T1}, {S_T1}, {QP_OFF}")
    A(f"buffer_store_dwordx2 v[{T0}:{T0+1}], v{TM}, {SRD_WS}, {S_T1} offen sc0 sc1")
    if not opt.get("early", 0) and not opt.get("tst", 0): stamp(1)
    def check_tags(tagregs):
        acc = V_TMP
        A(f"v_xor_b32 {acc}, {S_TAG}, v{tagregs[0]}")
        for t in tagregs[1:]:
            A(f"v_xor_b32 v{t}, {S_TAG}, v{t}\nv_or_b32 {acc}, {acc}, v{t}")
        A(f"v_cmp_ne_u32 vcc, 0, {acc}")
    def poll(loads, tagregs, name, sleep=1, pre_issued_wait=None):
        l_top = g.label(name); l_ok = g.label(name + "ok"); l_chk = g.label(name + "chk")
        A(f"s_mov_b32 {S_CNT}, 0")
        if pre_issued_wait is not None:
            A(f"s_waitcnt vmcnt({pre_issued_wait})\ns_branch {l_chk}")
        A(f"{l_top}:")
        for s in loads: A(s)
        A("s_waitcnt vmcnt(0)")
        A(f"{l_chk}:")
        check_tags(tagregs)
        A(f"s_cbranch_vccz {l_ok}")
        A(f"s_add_u32 {S_CNT}, {S_CNT}, 1\ns_cmp_lt_u32 {S_CNT}, 0x40000\ns_cbranch_scc0 {l_ok}")
        A(f"s_sleep {sleep}\ns_branch {l_top}")
        A(f"{l_ok}:")
    A(f"v_lshrrev_b32 v{TM}, 7, {V_TID}\nv_lshlrev_b32 v{TM}, 13, v{TM}")
    A(f"v_and_b32 v{TM+1}, 127, {V_TID}\nv_lshl_add_u32 v{TM}, v{TM+1}, 3, v{TM}")
    A(f"s_bfe_u32 {S_T1}, {S_WG}, 0x30004\ns_lshl_b32 {S_T1}, {S_T1}, 15")
    A(f"s_lshr_b32 {S_T2}, {S_WG}, 7\ns_lshl_b32 {S_T2}, {S_T2}, 10\ns_add_u32 {S_T1}, {S_T1}, {S_T2}")
    A(f"s_add_u32 s92, {S_T1}, {QP_OFF}\ns_add_u32 s93, s92, 4096\ns_add_u32 s94, s92, 16384\ns_add_u32 s95, s92, 20480")
    loadsA = []; tagsA = []
    for h in range(2):
        for dq in range(4):
            r = T0 + 8*h + 2*dq
            so = f"s{92 + 2*h + (dq >> 1)}"
            loadsA.append(f"buffer_load_dwordx2 v[{r}:{r+1}], v{TM}, {SRD_WS}, {so} offen offset:{(dq&1)*2048} sc0 sc1")
            tagsA.append(r+1)
    A(f"v_lshlrev_b32 v{TM+1}, 3, v{TM+1}")
    A(f"s_bfe_u32 {S_T3}, {S_WG}, 0x50002\ns_lshl_b32 {S_T3}, {S_T3}, 13")
    A(f"s_lshr_b32 {S_T4}, {S_WG}, 7\ns_lshl_b32 {S_T4}, {S_T4}, 10\ns_add_u32 {S_T3}, {S_T3}, {S_T4}")
    A(f"s_add_u32 {S_T3}, {S_T3}, {QP_OFF + 128*2048}\ns_add_u32 {S_T4}, {S_T3}, 4096")
    loadsB = [f"buffer_load_dwordx2 v[{T0+16+2*dq}:{T0+16+2*dq+1}], v{TM+1}, {SRD_WS}, {S_T3 if dq<2 else S_T4} offen offset:{(dq&1)*2048} sc0 sc1" for dq in range(4)]
    tagsB = [T0+17, T0+19, T0+21, T0+23]
    lbq2 = g.label("qw2")
    NMID = opt.get("nmid", 1)
    def tile_off(sidx):
        A(f"s_lshl_b32 {S_T5}, {sidx}, 12\ns_add_u32 {S_OFF}, {S_BBASE}, {S_T5}")
    def issue_slot(s):
        if s < 4:
            issueK(s, SRD_KA, S_REC); issueV(s, SRD_VA, S_REC)
            A(f"s_add_u32 {S_REC}, {S_REC}, 0x4000")
        else:
            A(f"s_add_u32 {S_IDX[s]}, {S_WAVE}, {(s-4)*NW}")
            tile_off(S_IDX[s])
            issueK(s, SRD_KB, S_OFF); issueV(s, SRD_VB, S_OFF)
    for s in range(NPRE, NPRE+NMID): issue_slot(s)
    def q_loads():
        lb = g.label("qw")
        A(f"s_cmp_ge_u32 {S_WAVE}, 2\ns_cbranch_scc1 {lb}")
        for x in loadsB: A(x)
        A(f"{lb}:")
        for x in loadsA: A(x)
    def q_check():
        lb = g.label("qc")
        check_tags(tagsA)
        A(f"s_cmp_ge_u32 {S_WAVE}, 2\ns_cbranch_scc1 {lb}")
        for t in tagsB: A(f"v_xor_b32 v{t}, {S_TAG}, v{t}\nv_or_b32 {V_TMP}, {V_TMP}, v{t}")
        A(f"v_cmp_ne_u32 vcc, 0, {V_TMP}")
        A(f"{lb}:")
    if opt.get("noq", 0): A(f"s_mov_b32 {S_RET}, 1")
    for s in range(NPRE+NMID, NS):
        l1 = g.label("qi"); l2 = g.label("qj")
        A(f"s_cmp_lg_u32 {S_RET}, 0\ns_cbranch_scc1 {l1}")
        q_loads()
        A(f"{l1}:")
        issue_slot(s)
        A(f"s_cmp_lg_u32 {S_RET}, 0\ns_cbranch_scc1 {l2}")
        A("s_waitcnt vmcnt(8)")
        q_check()
        A(f"s_cbranch_vccnz {l2}")
        A(f"s_mov_b32 {S_RET}, 1")
        A(f"{l2}:")
    lt = g.label("qf"); lo = g.label("qfo")
    A(f"s_cmp_lg_u32 {S_RET}, 0\ns_cbranch_scc1 {lo}\ns_mov_b32 {S_CNT}, 0")
    A(f"{lt}:")
    q_loads()
    A("s_waitcnt vmcnt(0)")
    q_check()
    A(f"s_cbranch_vccz {lo}")
    A(f"s_add_u32 {S_CNT}, {S_CNT}, 1\ns_cmp_lt_u32 {S_CNT}, 0x40000\ns_cbranch_scc0 {lo}")
    A(f"s_sleep 2\ns_branch {lt}")
    A(f"{lo}:")
    A(f"s_mov_b32 {S_RET}, 0")
    for h in range(2):
        r = T0 + 8*h
        A(f"v_add_f32 v{r}, v{r}, v{r+2}\nv_add_f32 v{r+4}, v{r+4}, v{r+6}\nv_add_f32 v{r}, v{r}, v{r+4}")
        A(f"v_cvt_pk_bf16_f32 v{r}, v{r}, v{r}")
    A(f"v_lshlrev_b32 v{TM+2}, 1, {V_TID}")
    A(f"ds_write_b16 v{TM+2}, v{T0} offset:{QL}\nds_write_b16 v{TM+2}, v{T0+8} offset:{QL+512}")
    A(f"s_cmp_ge_u32 {S_WAVE}, 2\ns_cbranch_scc1 {lbq2}")
    r = T0 + 16
    A(f"v_add_f32 v{r}, v{r}, v{r+2}\nv_add_f32 v{r+4}, v{r+4}, v{r+6}\nv_add_f32 v{r}, v{r}, v{r+4}")
    A(f"v_cvt_pk_bf16_f32 v{r}, v{r}, v{r}")
    A(f"ds_write_b16 v{TM+2}, v{r} offset:{QL + 1024}")
    A(f"{lbq2}:")
    A("s_waitcnt lgkmcnt(0)\ns_barrier")
    if not opt.get("tst", 0): stamp(2)
    A(f"v_lshrrev_b32 v{TM}, 2, {V_N}\nv_lshlrev_b32 v{TM}, 8, v{TM}\nv_lshl_add_u32 v{TM}, {V_G}, 4, v{TM}")
    for j in range(4): A(f"ds_read_b128 v[{Q0+4*j}:{Q0+4*j+3}], v{TM} offset:{QL + j*64}")
    def reset_acc():
        A(f"v_mov_b32 {V_M}, 0x{f2u(NEG):08x}\nv_mov_b32 {V_MC}, 0x{f2u(NEG):08x}\nv_mov_b32 {V_L}, 0")
        for i in range(8): A(f"v_mov_b32 v{O0+i}, 0")
    reset_acc()
    A("s_waitcnt lgkmcnt(0)")

    WO = T0
    def wo_tile(t):
        A(f"v_lshlrev_b32 v{TM+3}, 12, {V_G}\nv_lshl_add_u32 v{TM+3}, {V_N}, 4, v{TM+3}")
        A(f"s_bfe_u32 {S_T0}, {S_OWN}, 0x50002\ns_lshl_b32 {S_T0}, {S_T0}, 17\ns_lshl_b32 {S_T1}, {S_WAVE}, 15\ns_add_u32 {S_T0}, {S_T0}, {S_T1}")
        A(f"s_and_b32 {S_T1}, {S_OWN}, 3\ns_lshl_b32 {S_T1}, {S_T1}, 8\ns_add_u32 {S_T0}, {S_T0}, {S_T1}\ns_add_u32 {S_T0}, {S_T0}, {16384*t}")
        if opt.get("fakeW", 0) & 2:
            A(f"v_lshlrev_b32 v{TM+3}, 4, {V_LANE}\ns_and_b32 {S_T0}, {S_OWN}, 127\ns_lshl_b32 {S_T0}, {S_T0}, 15\ns_lshl_b32 {S_T1}, {S_WAVE}, 13\ns_add_u32 {S_T0}, {S_T0}, {S_T1}\ns_add_u32 {S_T0}, {S_T0}, {4096*t}")
        for rho in range(4):
            r = WO + 16*t + 4*rho
            A(f"buffer_load_dwordx4 v[{r}:{r+3}], v{TM+3}, {SRD_WO}, {S_T0} offen offset:{rho*1024} nt")
    pool_paths = []
    def compute(slot):
        n0 = len(g.L)
        compute_(slot)
        if opt.get('nocomp', 0):
            keep = []
            for ln in g.L[n0:]:
                t = ln.strip()
                if t.startswith('v_mfma') or t.startswith('v_exp') or t.startswith('v_perm') or t.startswith('v_fma') or t.startswith('v_mul') or t.startswith('v_cvt') or t.startswith('v_add_f32') or t.startswith('v_max') or t.startswith('v_sub') or t.startswith('v_mov') or t.startswith('s_nop'): continue
                keep.append(ln)
            g.L[n0:] = keep
    def compute_(slot):
        sidx = S_IDX[slot]
        K = slotK(slot); V = slotV(slot)
        A(f"s_mov_b64 exec, 1\nds_add_rtn_u32 {V_GRAB}, {V_CNTADDR}, {V_ONE}\ns_mov_b64 exec, -1")
        A(f"s_waitcnt vmcnt({W})")
        if opt.get("prog2", 0):
            lb = g.label("pr")
            A(f"s_cmp_lg_u32 {S_WAVE}, 0\ns_cbranch_scc1 {lb}")
            A("s_memrealtime s[90:91]\ns_waitcnt lgkmcnt(0)")
            A(f"v_mov_b32 v156, s90\nv_mov_b32 v157, s91")
            A(f"s_lshl_b32 s100, {S_WG}, 12\ns_lshl_b32 s101, s63, 3\ns_add_u32 s100, s100, s101\ns_add_u32 s100, s100, 0x900000\ns_add_u32 s63, s63, 1")
            A(f"s_mov_b64 exec, 1\nbuffer_store_dwordx2 v[156:157], off, {SRD_WS}, s100\ns_mov_b64 exec, -1")
            A(f"{lb}:")
        for j in range(4):
            c = "0" if j == 0 else f"v[{S0}:{S0+3}]"
            A(f"v_mfma_f32_16x16x32_bf16 v[{S0}:{S0+3}], a[{K+4*j}:{K+4*j+3}], v[{Q0+4*j}:{Q0+4*j+3}], {c}")
        A("s_waitcnt lgkmcnt(0)")
        A(f"v_readfirstlane_b32 {sidx}, {V_GRAB}")
        A("s_nop 3")
        tile_off(sidx)
        lp = g.label("pool"); lr = g.label("poolret")
        A(f"s_cmp_ge_u32 {sidx}, {NSTAT - 16 if POOL else 256}\ns_cbranch_scc1 {lp}")
        A(f"{lr}:")
        lk = g.label("afterK"); lv = g.label("woV"); lvr = g.label("afterV")
        pool_paths.append((lp, lr, sidx, lk, lv, lvr))
        issueK(slot, SRD_KB, S_OFF)
        A(f"{lk}:")
        A(f"v_max3_f32 v{TM}, v{S0}, v{S0+1}, v{S0+2}\nv_max_f32 v{TM}, v{TM}, v{S0+3}")
        A(f"v_cmp_gt_f32 vcc, v{TM}, {V_M}")
        lf = g.label("fast")
        A(f"s_cbranch_vccz {lf}")
        A(f"v_mov_b32 v{TM+1}, v{TM}\ns_nop 1\nv_permlane32_swap_b32 v{TM+1}, v{TM}\ns_nop 1\nv_max_f32 v{TM}, v{TM}, v{TM+1}")
        A(f"v_mov_b32 v{TM+1}, v{TM}\ns_nop 1\nv_permlane16_swap_b32 v{TM+1}, v{TM}\ns_nop 1\nv_max_f32 v{TM}, v{TM}, v{TM+1}")
        A(f"v_max_f32 {V_M}, {V_M}, v{TM}")
        A(f"v_mul_f32 v{TM+1}, {S_C}, {V_M}")
        A(f"v_sub_f32 v{TM+2}, {V_MC}, v{TM+1}")
        A(f"v_exp_f32 v{TM+2}, v{TM+2}")
        A(f"v_mov_b32 {V_MC}, v{TM+1}")
        A(f"v_mul_f32 {V_L}, {V_L}, v{TM+2}")
        for i in range(8): A(f"v_mul_f32 v{O0+i}, v{O0+i}, v{TM+2}")
        A(f"{lf}:")
        for i in range(4): A(f"v_fma_f32 v{P0+i}, v{S0+i}, {S_C}, -{V_MC}")
        for i in range(4): A(f"v_exp_f32 v{P0+i}, v{P0+i}")
        A("s_nop 0")
        A(f"v_cvt_pk_bf16_f32 v{TT}, v{P0}, v{P0+1}\nv_cvt_pk_bf16_f32 v{TT+1}, v{P0+2}, v{P0+3}")
        A(f"v_add_f32 v{P0}, v{P0}, v{P0+1}\nv_add_f32 v{P0+2}, v{P0+2}, v{P0+3}")
        diag()
        A(f"v_add_f32 {V_L}, {V_L}, v{P0}\nv_add_f32 {V_L}, {V_L}, v{P0+2}")
        A(f"s_waitcnt vmcnt({W})")
        dmfma(O0, aop(V))
        A(f"s_cmp_eq_u32 {S_RET}, 1\ns_cbranch_scc1 {lv}")
        issueV(slot, SRD_VB, S_OFF)
        A(f"{lvr}:")

    def emit_pool_paths():
        for (lp, lr, sidx, lk, lv, lvr) in pool_paths:
            A(f"{lp}:")
            if not POOL:
                A(f"s_mov_b32 {sidx}, 0x{INVALID:x}\ns_mov_b32 {S_OFF}, 0x7ff00000")
                A(f"s_cmp_lg_u32 {S_RET}, 0\ns_cbranch_scc1 {lr}")
                A(f"s_mov_b32 {S_RET}, 1")
                wo_tile(0)
                A(f"s_branch {lk}")
                A(f"{lv}:")
                A(f"s_mov_b32 {S_RET}, 2")
                wo_tile(1)
                A(f"s_branch {lvr}")
                continue
            lnr = g.label("noreq"); lsp = g.label("spin"); lskip = g.label("rskip"); linv = g.label("inval"); lsp2 = g.label("spin")
            A(f"s_and_b32 {S_T0}, {sidx}, {CH-1}\ns_cmp_lg_u32 {S_T0}, 0\ns_cbranch_scc1 {lnr}")
            A(f"s_sub_u32 {S_T0}, {sidx}, {NSTAT-16}\ns_lshr_b32 {S_T0}, {S_T0}, {LCH}")
            A(f"s_cmp_ge_u32 {S_T0}, 64\ns_cbranch_scc1 {lnr}")
            A(f"s_mov_b32 {S_T1}, 0\ns_cmp_eq_u32 {S_T0}, 0\ns_cbranch_scc1 {lskip}")
            A(f"s_lshl_b32 {S_T2}, {S_T0}, 2\ns_add_u32 {S_T2}, {S_T2}, {CB-4}\nv_mov_b32 v{TM}, {S_T2}\ns_mov_b32 {S_CNT}, 0")
            A(f"{lsp}:")
            A(f"ds_read_b32 v{TM+1}, v{TM}\ns_waitcnt lgkmcnt(0)\nv_readfirstlane_b32 {S_T1}, v{TM+1}\ns_add_u32 {S_CNT}, {S_CNT}, 1")
            A(f"s_cmp_ge_u32 {S_CNT}, 0x400000\ns_cbranch_scc1 {lskip}")
            A(f"s_cmp_eq_u32 {S_T1}, -1\ns_cbranch_scc1 {lsp}")
            A(f"{lskip}:")
            A(f"v_mov_b32 v{TM+1}, {PCH}\ns_cmp_ge_u32 {S_T1}, {PCH}\ns_cbranch_scc1 {lskip}_w")
            A(f"s_mov_b32 {S_T1}, 1\ns_atomic_add {S_T1}, s[88:89], {S_POOL} glc\ns_waitcnt lgkmcnt(0)\nv_mov_b32 v{TM+1}, {S_T1}")
            A(f"{lskip}_w:")
            A(f"s_lshl_b32 {S_T2}, {S_T0}, 2\ns_add_u32 {S_T2}, {S_T2}, {CB}\nv_mov_b32 v{TM}, {S_T2}")
            A(f"s_mov_b64 exec, 1\nds_write_b32 v{TM}, v{TM+1}\ns_mov_b64 exec, -1")
            A(f"{lnr}:")
            A(f"s_cmp_lt_u32 {sidx}, {NSTAT}\ns_cbranch_scc1 {lr}")
            A(f"s_sub_u32 {S_T0}, {sidx}, {NSTAT}\ns_and_b32 {S_T3}, {S_T0}, {CH-1}\ns_lshr_b32 {S_T0}, {S_T0}, {LCH}")
            A(f"s_cmp_ge_u32 {S_T0}, 64\ns_cbranch_scc1 {linv}")
            A(f"s_lshl_b32 {S_T2}, {S_T0}, 2\ns_add_u32 {S_T2}, {S_T2}, {CB}\nv_mov_b32 v{TM}, {S_T2}\ns_mov_b32 {S_CNT}, 0")
            A(f"{lsp2}:")
            A(f"ds_read_b32 v{TM+1}, v{TM}\ns_waitcnt lgkmcnt(0)\nv_readfirstlane_b32 {S_T1}, v{TM+1}\ns_add_u32 {S_CNT}, {S_CNT}, 1")
            A(f"s_cmp_ge_u32 {S_CNT}, 0x400000\ns_cbranch_scc1 {linv}")
            A(f"s_cmp_eq_u32 {S_T1}, -1\ns_cbranch_scc1 {lsp2}")
            A(f"s_cmp_ge_u32 {S_T1}, {PCH}\ns_cbranch_scc1 {linv}")
            import math
            lg = int(math.log2(PQ)); assert (1 << lg) == PQ
            A(f"s_lshl_b32 {S_T1}, {S_T1}, {LCH}\ns_add_u32 {S_T1}, {S_T1}, {S_T3}")
            A(f"s_and_b32 {S_T2}, {S_T1}, {PQ-1}\ns_add_u32 {S_T2}, {S_T2}, {NSTAT}\ns_lshl_b32 {S_T2}, {S_T2}, 12")
            A(f"s_lshr_b32 {S_T1}, {S_T1}, {lg}\ns_lshl_b32 {S_T1}, {S_T1}, 20\ns_add_u32 {S_OFF}, {S_PBASE}, {S_T1}\ns_add_u32 {S_OFF}, {S_OFF}, {S_T2}")
            A(f"s_branch {lr}")
            A(f"{linv}:")
            A(f"s_mov_b32 {sidx}, 0x{INVALID:x}\ns_mov_b32 {S_OFF}, 0x7ff00000\ns_branch {lr}")

    def flush(area, mlarea, cntoff, isA):
        A(f"v_mov_b32 v{TM+1}, {V_L}\ns_nop 1\nv_permlane32_swap_b32 v{TM+1}, {V_L}\ns_nop 1\nv_add_f32 {V_L}, {V_L}, v{TM+1}")
        A(f"v_mov_b32 v{TM+1}, {V_L}\ns_nop 1\nv_permlane16_swap_b32 v{TM+1}, {V_L}\ns_nop 1\nv_add_f32 {V_L}, {V_L}, v{TM+1}")
        A("s_nop 7")
        deposit(area)
        A(f"v_lshrrev_b32 v{TM}, 2, {V_N}\nv_lshlrev_b32 v{TM}, 3, v{TM}\ns_lshl_b32 {S_T0}, {S_WAVE}, 5\nv_add_u32 v{TM}, {S_T0}, v{TM}")
        A(f"v_mov_b32 v{TM+2}, {V_MC}\nv_mov_b32 v{TM+3}, {V_L}")
        A(f"ds_write_b64 v{TM}, v[{TM+2}:{TM+3}] offset:{mlarea}")
        A("s_waitcnt lgkmcnt(0)")
        A(f"s_mov_b64 exec, 1\nds_add_rtn_u32 v{TM}, {V_CNTADDR}, {V_ONE} offset:{cntoff}\ns_mov_b64 exec, -1")
        A("s_waitcnt lgkmcnt(0)")
        A(f"v_readfirstlane_b32 {S_T0}, v{TM}")
        lb = g.label("nomerge")
        A("s_nop 3")
        A(f"s_cmp_lg_u32 {S_T0}, {NW-1}\ns_cbranch_scc1 {lb}")
        MB = T0 + 32
        A(f"v_lshlrev_b32 v{TM}, 3, {V_G}")
        for k in range(NW): A(f"ds_read_b64 v[{MB+2*k}:{MB+2*k+1}], v{TM} offset:{mlarea + k*32}")
        A(f"v_lshlrev_b32 v{TM+1}, 9, {V_G}\nv_lshl_add_u32 v{TM+1}, {V_N}, 5, v{TM+1}")
        OB = T0 + 44
        for k in range(NW):
            A(f"ds_read_b128 v[{OB+8*k}:{OB+8*k+3}], v{TM+1} offset:{area + k*2048}")
            A(f"ds_read_b128 v[{OB+8*k+4}:{OB+8*k+7}], v{TM+1} offset:{area + k*2048 + 16}")
        A(f"s_waitcnt lgkmcnt({2*NW})")
        M = T0 + 40; Ls = T0 + 41
        A(f"v_max3_f32 v{M}, v{MB}, v{MB+2}, v{MB+4}\nv_max_f32 v{M}, v{M}, v{MB+6}")
        for k in range(NW): A(f"v_sub_f32 v{MB+2*k}, v{MB+2*k}, v{M}")
        for k in range(NW): A(f"v_exp_f32 v{MB+2*k}, v{MB+2*k}")
        A("s_nop 0")
        A(f"v_mul_f32 v{Ls}, v{MB}, v{MB+1}")
        for k in range(1, NW): A(f"v_fmac_f32 v{Ls}, v{MB+2*k}, v{MB+2*k+1}")
        ACC = T0 + 76
        A("s_waitcnt lgkmcnt(0)")
        for i in range(8): A(f"v_mul_f32 v{ACC+i}, v{MB}, v{OB+i}")
        for k in range(1, NW):
            for i in range(8): A(f"v_fmac_f32 v{ACC+i}, v{MB+2*k}, v{OB+8*k+i}")
        for i in range(8):
            A(f"v_mov_b32 v{OB+2*i}, v{ACC+i}\nv_mov_b32 v{OB+2*i+1}, {S_TAG}")
        A(f"v_mov_b32 v{OB+16}, v{M}\nv_mov_b32 v{OB+17}, {S_TAG}\nv_mov_b32 v{OB+18}, v{Ls}\nv_mov_b32 v{OB+19}, {S_TAG}")
        if isA:
            A(f"s_mul_i32 {S_T0}, {S_WG}, {4*REC}\ns_add_u32 {S_T0}, {S_T0}, {RA_OFF}")
            A(f"v_mul_u32_u24 v{TM}, {REC}, {V_G}")
        else:
            A(f"s_mul_i32 {S_T0}, {S_WG}, {REC}\ns_add_u32 {S_T0}, {S_T0}, {RB_OFF}")
            A(f"v_mov_b32 v{TM}, 0")
            A("s_mov_b64 exec, 0xffff")
        A(f"v_lshl_add_u32 v{TM+1}, {V_N}, 6, v{TM}")
        A(f"v_cmp_eq_u32 vcc, 0, {V_N}")
        A(f"buffer_store_dwordx4 v[{OB+16}:{OB+19}], v{TM}, {SRD_WS}, {S_T0} offen offset:1024 sc0 sc1" if False else "s_nop 0")
        for i in range(4):
            A(f"buffer_store_dwordx4 v[{OB+4*i}:{OB+4*i+3}], v{TM+1}, {SRD_WS}, {S_T0} offen offset:{i*16} sc0 sc1")
        A(f"s_and_b64 exec, exec, vcc")
        A(f"buffer_store_dwordx4 v[{OB+16}:{OB+19}], v{TM}, {SRD_WS}, {S_T0} offen offset:1024 sc0 sc1")
        A("s_mov_b64 exec, -1")
        if stamps and (not isA) and opt.get("tst", 0): stamp_now(1)
        A(f"{lb}:")

    def final_stage():
        A(f"v_lshrrev_b32 v{TM}, 1, {V_LANE}\nv_lshlrev_b32 v{TM}, 11, v{TM}\nv_and_b32 v{TM+1}, 1, {V_LANE}\nv_lshl_add_u32 v{TM}, v{TM+1}, 10, v{TM}")
        A(f"s_lshr_b32 {S_T0}, {S_OWN}, 7\ns_lshl_b32 {S_T0}, {S_T0}, 2\ns_and_b32 {S_T1}, {S_OWN}, 3\ns_add_u32 {S_T0}, {S_T0}, {S_T1}\ns_lshl_b32 {S_T0}, {S_T0}, 16")
        A(f"s_bfe_u32 {S_T1}, {S_OWN}, 0x50002\ns_lshl_b32 {S_T1}, {S_T1}, 5\ns_add_u32 {S_T0}, {S_T0}, {S_T1}\ns_add_u32 {S_T0}, {S_T0}, {YP_OFF}")
        F = T0 + 32
        loads = [f"buffer_load_dwordx4 v[{F}:{F+3}], v{TM}, {SRD_WS}, {S_T0} offen sc0 sc1",
                 f"buffer_load_dwordx4 v[{F+4}:{F+7}], v{TM}, {SRD_WS}, {S_T0} offen offset:16 sc0 sc1"]
        poll(loads, [F+1, F+3, F+5, F+7], "yp", sleep=1)
        ys = [F, F+2, F+4, F+6]
        for rr in (2, 4, 8):
            for y in ys: A(f"v_add_f32_dpp v{y}, v{y}, v{y} row_ror:{rr} row_mask:0xf bank_mask:0xf")
        for sw in ("v_permlane16_swap_b32", "v_permlane32_swap_b32"):
            for y in ys: A(f"v_mov_b32 v{y+1}, v{y}")
            A("s_nop 1")
            for y in ys: A(f"{sw} v{y+1}, v{y}")
            A("s_nop 1")
            for y in ys: A(f"v_add_f32 v{y}, v{y}, v{y+1}")
        A(f"v_cvt_pk_bf16_f32 v{F+8}, v{F}, v{F+2}\nv_cvt_pk_bf16_f32 v{F+9}, v{F+4}, v{F+6}")
        A(f"v_lshlrev_b32 v{TM+1}, 11, v{TM+1}")
        A(f"s_lshr_b32 {S_T0}, {S_OWN}, 7\ns_lshl_b32 {S_T0}, {S_T0}, 10\ns_and_b32 {S_T1}, {S_OWN}, 3\ns_lshl_b32 {S_T1}, {S_T1}, 8\ns_add_u32 {S_T0}, {S_T0}, {S_T1}")
        A(f"s_bfe_u32 {S_T1}, {S_OWN}, 0x50002\ns_lshl_b32 {S_T1}, {S_T1}, 3\ns_add_u32 {S_T0}, {S_T0}, {S_T1}")
        A("s_mov_b64 exec, 3")
        A(f"buffer_store_dwordx2 v[{F+8}:{F+9}], v{TM+1}, {SRD_OUT}, {S_T0} offen")
        A("s_mov_b64 exec, -1")

    RB0 = T0 + 96
    OV0 = T0 + 136; OV1 = T0 + 137
    YA = T0 + 76
    RM = T0 + 84; RL = T0 + 85; RO = T0 + 86
    def owner_loads(isA):
        nrec = 2 if isA else 1
        loads = []; tags = []
        for r in range(nrec):
            b = RB0 + 20*r
            so = "s92" if r == 0 else "s94"; sm = "s93" if r == 0 else "s95"
            for t in range(2):
                loads.append(f"buffer_load_dwordx4 v[{b+8*t}:{b+8*t+3}], v{OV1}, {SRD_WS}, {so} offen offset:{128*t} sc0 sc1")
                loads.append(f"buffer_load_dwordx4 v[{b+8*t+4}:{b+8*t+7}], v{OV1}, {SRD_WS}, {so} offen offset:{128*t+16} sc0 sc1")
            loads.append(f"buffer_load_dwordx4 v[{b+16}:{b+19}], v{OV0}, {SRD_WS}, {sm} offen sc0 sc1")
            tags += [b+1+2*i for i in range(10)]
        return loads, tags
    def owner_wo():
        A(f"v_lshlrev_b32 v{TM}, 12, {V_G}\nv_lshl_add_u32 v{TM}, {V_N}, 4, v{TM}")
        A(f"s_bfe_u32 {S_T0}, {S_OWN}, 0x50002\ns_lshl_b32 {S_T0}, {S_T0}, 17\ns_lshl_b32 {S_T1}, {S_WAVE}, 15\ns_add_u32 {S_T0}, {S_T0}, {S_T1}")
        A(f"s_and_b32 {S_T1}, {S_OWN}, 3\ns_lshl_b32 {S_T1}, {S_T1}, 8\ns_add_u32 {S_T0}, {S_T0}, {S_T1}\ns_add_u32 {S_T1}, {S_T0}, 16384")
        for t in range(2):
            for rho in range(4):
                r = WO + 16*t + 4*rho
                A(f"buffer_load_dwordx4 v[{r}:{r+3}], v{TM}, {SRD_WO}, {S_T0 if t == 0 else S_T1} offen offset:{rho*1024} nt")
    def owner_addr(isA):
        A(f"s_bfe_u32 {S_T0}, {S_OWN}, 0x50002")
        if isA:
            A(f"s_lshr_b32 {S_T1}, {S_T0}, 2\ns_lshl_b32 {S_T1}, {S_T1}, 6\ns_and_b32 {S_T2}, {S_T0}, 3\ns_add_u32 {S_T1}, {S_T1}, {S_T2}")
            A(f"s_mul_i32 {S_REC}, {S_T1}, {REC}\ns_add_u32 {S_REC}, {S_REC}, {RA_OFF}")
            stride = 4*REC; bstr = 8*16*4*REC
        else:
            A(f"s_mul_i32 {S_REC}, {S_T0}, {4*REC}\ns_add_u32 {S_REC}, {S_REC}, {RB_OFF}")
            stride = REC; bstr = 32*4*REC
        A(f"s_mov_b32 {S_T3}, {bstr}")
        A(f"v_bfe_u32 v{OV0}, {V_N}, 2, 1\nv_mul_lo_u32 v{OV0}, v{OV0}, {S_T3}")
        A(f"v_and_b32 v{TM}, 3, {V_N}")
        if isA:
            A(f"v_lshrrev_b32 v{TM+1}, 3, {V_N}\nv_lshl_add_u32 v{TM}, v{TM+1}, 2, v{TM}\nv_lshlrev_b32 v{TM}, 1, v{TM}")
        A(f"s_mov_b32 {S_T3}, {stride}\nv_mul_lo_u32 v{TM}, v{TM}, {S_T3}\nv_add_u32 v{OV0}, v{OV0}, v{TM}")
        A(f"v_lshl_add_u32 v{OV1}, {V_G}, 5, v{OV0}")
        A(f"s_lshl_b32 {S_T1}, {S_WAVE}, 8")
        A(f"s_add_u32 s92, {S_REC}, {S_T1}\ns_add_u32 s93, {S_REC}, 1024")
        if isA: A(f"s_add_u32 s94, s92, {stride}\ns_add_u32 s95, s93, {stride}")
    def owner_consume(isA, ret_label):
        b0 = RB0; b1 = RB0 + 20
        oreg = lambda b, i: b + 8*(i >> 2) + 2*(i & 3)
        if isA:
            A(f"v_max_f32 v{RM}, v{b0+16}, v{b1+16}")
            A(f"v_sub_f32 v{b0+16}, v{b0+16}, v{RM}\nv_sub_f32 v{b1+16}, v{b1+16}, v{RM}")
            A(f"v_exp_f32 v{b0+16}, v{b0+16}\nv_exp_f32 v{b1+16}, v{b1+16}")
            A("s_nop 0")
            A(f"v_mul_f32 v{RL}, v{b0+16}, v{b0+18}\nv_fmac_f32 v{RL}, v{b1+16}, v{b1+18}")
            for i in range(8):
                A(f"v_mul_f32 v{RO+i}, v{b0+16}, v{oreg(b0,i)}\nv_fmac_f32 v{RO+i}, v{b1+16}, v{oreg(b1,i)}")
        else:
            A(f"v_mov_b32 v{RM}, v{b0+16}\nv_mov_b32 v{RL}, v{b0+18}")
            for i in range(8): A(f"v_mov_b32 v{RO+i}, v{oreg(b0,i)}")
        steps = ["quad_perm:[1,0,3,2]", "quad_perm:[2,3,0,1]"] + (["row_ror:8"] if isA else [])
        MA = TM + 2
        A(f"v_mov_b32 v{MA}, v{RM}")
        for st in steps:
            A("s_nop 1")
            A(f"v_max_f32_dpp v{MA}, v{MA}, v{MA} {st} row_mask:0xf bank_mask:0xf")
        A(f"v_sub_f32 v{RM}, v{RM}, v{MA}")
        A(f"v_exp_f32 v{RM}, v{RM}")
        A("s_nop 0")
        vals = [RL] + [RO+i for i in range(8)]
        for v in vals: A(f"v_mul_f32 v{v}, v{v}, v{RM}")
        for st in steps:
            for v in vals: A(f"v_add_f32_dpp v{v}, v{v}, v{v} {st} row_mask:0xf bank_mask:0xf")
        A(f"v_rcp_f32 v{RL}, v{RL}")
        A("s_nop 0")
        for i in range(8): A(f"v_mul_f32 v{RO+i}, v{RO+i}, v{RL}")
        for i in range(8): A(f"v_mov_b32 v{YA+i}, 0")
        for t in range(2):
            A(f"v_cvt_pk_bf16_f32 v{TT}, v{RO+4*t}, v{RO+4*t+1}\nv_cvt_pk_bf16_f32 v{TT+1}, v{RO+4*t+2}, v{RO+4*t+3}")
            diag()
            A("s_nop 1")
            dmfma(YA, vop(WO + 16*t))
            A("s_nop 1")
        A("s_nop 7\ns_nop 1")
        deposit(DY, YA)
        if opt.get("tst", 0) and not isA: stamp(3)
        A("s_waitcnt lgkmcnt(0)")
        A(f"s_mov_b64 exec, 1\nds_add_rtn_u32 v{TM}, {V_CNTADDR}, {V_ONE} offset:12\ns_mov_b64 exec, -1")
        A("s_waitcnt lgkmcnt(0)")
        A(f"v_readfirstlane_b32 {S_T0}, v{TM}")
        A("s_nop 3")
        A(f"s_cmp_lg_u32 {S_T0}, {NW-1}\ns_cbranch_scc1 {ret_label}")
        A(f"v_lshlrev_b32 v{TM}, 4, {V_LANE}")
        Y = T0 + 32
        for k in range(NW): A(f"ds_read_b128 v[{Y+4*k}:{Y+4*k+3}], v{TM} offset:{DY + k*2048}")
        A("s_waitcnt lgkmcnt(0)")
        for k in range(1, NW):
            for i in range(4): A(f"v_add_f32 v{Y+i}, v{Y+i}, v{Y+4*k+i}")
        G_ = T0 + 52
        for i in range(4): A(f"v_mov_b32 v{G_+2*i}, v{Y+i}\nv_mov_b32 v{G_+2*i+1}, {S_TAG}")
        A(f"v_lshlrev_b32 v{TM}, 5, {V_LANE}")
        A(f"s_lshr_b32 {S_T0}, {S_OWN}, 7\ns_lshl_b32 {S_T0}, {S_T0}, 2\ns_and_b32 {S_T1}, {S_OWN}, 3\ns_add_u32 {S_T0}, {S_T0}, {S_T1}\ns_lshl_b32 {S_T0}, {S_T0}, 16")
        A(f"s_bfe_u32 {S_T1}, {S_OWN}, 0x50002\ns_lshl_b32 {S_T1}, {S_T1}, 11\ns_add_u32 {S_T0}, {S_T0}, {S_T1}\ns_add_u32 {S_T0}, {S_T0}, {YP_OFF}")
        A(f"buffer_store_dwordx4 v[{G_}:{G_+3}], v{TM}, {SRD_WS}, {S_T0} offen sc0 sc1")
        A(f"buffer_store_dwordx4 v[{G_+4}:{G_+7}], v{TM}, {SRD_WS}, {S_T0} offen offset:16 sc0 sc1")

    for s in range(4): compute(s)
    flush(DA, MLA, 4, True)
    reset_acc()
    A(f"v_lshlrev_b32 v{TM}, 4, {V_G}")
    for j in range(4): A(f"ds_read_b128 v[{Q0+4*j}:{Q0+4*j+3}], v{TM} offset:{QL + 1024 + j*64}")
    A("s_waitcnt lgkmcnt(0)")
    if not opt.get("tst", 0): stamp(3)
    order = list(range(4, NS)) + [0, 1, 2, 3]
    A("L_loop:")
    if opt.get("prog", 0):
        lb = g.label("pr")
        A(f"s_cmp_lg_u32 {S_WAVE}, 0\ns_cbranch_scc1 {lb}")
        A("s_memrealtime s[90:91]\ns_waitcnt lgkmcnt(0)")
        A(f"v_mov_b32 v156, s90\nv_mov_b32 v157, s91\nv_mov_b32 v158, {S_IDX[order[0]]}\nv_mov_b32 v159, 0")
        A(f"s_lshl_b32 s100, {S_WG}, 12\ns_lshl_b32 s101, s63, 4\ns_add_u32 s100, s100, s101\ns_add_u32 s100, s100, 0x900000\ns_add_u32 s63, s63, 1")
        A(f"s_mov_b64 exec, 1\nbuffer_store_dwordx4 v[156:159], off, {SRD_WS}, s100\ns_mov_b64 exec, -1")
        A(f"{lb}:")
    A(f"s_cmp_ge_u32 {S_IDX[order[0]]}, 0x{INVALID:x}\ns_cbranch_scc1 L_done")
    for i, s in enumerate(order):
        if i > 0: A(f"s_cmp_ge_u32 {S_IDX[s]}, 0x{INVALID:x}\ns_cbranch_scc1 L_done")
        compute(s)
    A("s_branch L_loop")
    emit_pool_paths()
    A("L_done:")
    stamp(4)
    A(f"s_cmp_lt_u32 {S_OWN}, 128\ns_cbranch_scc1 L_tailA")
    flush(DB, MLB, 8, False)
    stamp(5)
    owner_addr(False)
    lb_, tb_ = owner_loads(False)
    if opt.get("pst", 0): A("s_memrealtime s[96:97]")
    poll(lb_, tb_, "brec", sleep=opt.get("bsleep", 1))
    if opt.get("pst", 0):
        lb = g.label("ps")
        A(f"s_cmp_lg_u32 {S_WAVE}, 0\ns_cbranch_scc1 {lb}")
        A("s_memrealtime s[98:99]\ns_waitcnt lgkmcnt(0)")
        A(f"v_mov_b32 v156, {S_CNT}\nv_mov_b32 v157, s96\nv_mov_b32 v158, s98\nv_mov_b32 v159, 0")
        A(f"s_lshl_b32 s100, {S_WG}, 4\ns_add_u32 s100, s100, 0xA00000")
        A(f"s_mov_b64 exec, 1\nbuffer_store_dwordx4 v[156:159], off, {SRD_WS}, s100\ns_mov_b64 exec, -1")
        A(f"{lb}:")
    if opt.get("tst", 0): stamp(2)
    owner_consume(False, "L_end")
    if stamps: stamp_now(6)
    final_stage()
    if stamps: stamp_now(7)
    A("s_branch L_end")
    A("L_tailA:")
    flush(DB, MLB, 8, False)
    stamp(5)
    owner_addr(True)
    la, ta = owner_loads(True)
    poll(la, ta, "arec", sleep=2)
    owner_consume(True, "L_end")
    final_stage()
    A(f"s_cmp_lg_u32 {S_OWN}, 0\ns_cbranch_scc1 L_end")
    A(f"s_mov_b64 exec, 1\nv_mov_b32 v{T0+10}, {S_TAG}")
    A(f"buffer_store_dword v{T0+10}, off, {SRD_WS}, 0 sc0 sc1")
    A("L_end:")
    A("s_endpgm")
    hl = FLAGS[opt.get("hl", 6)]; hs = FLAGS[opt.get("hs", 6)]
    out = []
    for line in g.L:
        if line.rstrip().endswith(" sc0 sc1"):
            if "buffer_load" in line: line = line.replace(" sc0 sc1", hl)
            elif "buffer_store" in line: line = line.replace(" sc0 sc1", hs)
        out.append(line)
    return out, NARCH + 32*NS

HEADER = open("cdna_kernels/" + NAME + ".s.ref").read().split("; Override launch geometry")[0]

def emit(opt, path):
    body, nvgpr = build(opt)
    out = HEADER
    out += "; Override launch geometry by editing the next line (default: block=256,\n"
    out += f"; @launch grid=(256,1,1) block=({NW*64},1,1) lds={LDS_BYTES}\n"
    out += '.amdgcn_target "amdgcn-amd-amdhsa--gfx950"\n.text\n'
    out += f".globl {KN}\n.p2align 8\n.type {KN},@function\n{KN}:\n"
    out += "\n".join(body) + "\n"
    out += f""".section .rodata,"a"
.p2align 6
.amdhsa_kernel {KN}
  .amdhsa_next_free_vgpr {nvgpr}
  .amdhsa_next_free_sgpr 102
  .amdhsa_accum_offset {NARCH}
  .amdhsa_group_segment_fixed_size 0
  .amdhsa_kernarg_size 104
  .amdhsa_user_sgpr_count 2
  .amdhsa_user_sgpr_kernarg_segment_ptr 1
  .amdhsa_system_sgpr_workgroup_id_x 1
.end_amdhsa_kernel
"""
    open(path, "w").write(out)

if __name__ == "__main__":
    opt = {}
    path = "cdna_kernels/" + NAME + ".s"
    for a in sys.argv[1:]:
        if a.startswith("-o"): path = a[2:]
        elif "=" in a:
            k, v = a.split("="); opt[k] = int(v)
    emit(opt, path)
```

```python
import sys, struct, os

NAME = "concat_heads__sliding_block_cached__mha_block_cached__decode"
KN = NAME + "_kernel"
def f2u(f): return struct.unpack("<I", struct.pack("<f", f))[0]

class Gen:
    def __init__(self):
        self.L = []; self.lab = 0
    def A(self, s):
        for line in s.split("\n"):
            line = line.strip()
            self.L.append(line if line.endswith(":") else "    " + line)
    def label(self, base):
        self.lab += 1
        return f"L_{base}_{self.lab}"

NW = 4
QP_OFF = 0x1000; RA_OFF = 0x100000; RB_OFF = 0x300000; YP_OFF = 0x400000; ST_OFF = 0x800000
REC = 1088
MLA = 0; MLB = 256; CNT = 512; QL = 896
DQ = 2304; DY = 2304; DA = DQ + NW*2048; DB = DA + NW*2048
LDS_BYTES = 28672
CSCALE = 1.4426950408889634
SSCALE = 128 ** -0.5
TAGINC = 0x9E3779B9
NEG = -1.0e30
FLAGS = {0: "", 1: " nt", 2: " sc1 nt", 3: " sc0 sc1 nt", 4: " sc0 nt", 5: " sc1", 6: " sc0 sc1", 7: " sc0"}
ATYPE = 0x1000; INVALID = 0x8000; NT = 272

S_WG = "s2"; S_WAVE = "s3"
S_IDX = ["s48", "s49", "s4", "s57", "s59", "s60"]
S_A0 = "s5"; S_RET = "s6"; S_ABASE = "s7"; S_OWN = "s62"; S_PH = "s61"; S_QA = "s63"
SRD_KA = "s[8:11]"; SRD_VA = "s[12:15]"; SRD_KB = "s[16:19]"; SRD_VB = "s[20:23]"
SRD_WS = "s[24:27]"; SRD_WQ = "s[28:31]"; SRD_X = "s[32:35]"; SRD_WO = "s[36:39]"; SRD_OUT = "s[40:43]"
S_TAG = "s44"; S_C = "s45"; S_SC = "s101"; S_HI = "s89x"; S_BBASE = "s46"; S_OFF = "s47"
S_T0 = "s50"; S_T1 = "s51"; S_T2 = "s52"; S_T3 = "s53"; S_T4 = "s54"; S_T5 = "s55"
S_CNT = "s56"; S_REC = "s58"; S_AEND = "s90"; S_LASTG = "s91"
V_TID = "v0"; V_LANE = "v1"; V_N = "v2"; V_G = "v3"; V_KOFF = "v4"; V_VOFF = "v5"
V_SEL = [6, 7, 8, 9]
V_CNTADDR = "v13"; V_ONE = "v14"; V_GRAB = "v15"
S0 = 16; P0 = 44; TT = 48; X0 = 50; TM = 58
V_DEP = "v62"; V_TMP = "v63"
T0 = 64
KB_ = dict(Q=28, O=20, M="v10", MC="v11", L="v12")
KA_ = dict(Q=208, O=224, M="v232", MC="v233", L="v234")
V_QAOFF = "v235"
NARCH = 240

def build(opt):
    g = Gen(); A = g.A
    stamps = opt.get("stamps", 0); tst = opt.get("tst", 0)
    NS = opt.get("ns", 3)
    W = 8*(NS-1) + 4
    XS = opt.get("xs", 0)
    A0BASE = opt.get("a0", 32); A0STEP = opt.get("a0s", 0)
    assert A0BASE >= (2*NS+XS)*NW and A0BASE + 15*A0STEP + 16 <= NT
    slotK = lambda s: 32*s
    slotV = lambda s: 32*s + 16
    def stamp(k, wave=0):
        if not stamps: return
        lb = g.label("st")
        A(f"s_cmp_lg_u32 {S_WAVE}, {wave}\ns_cbranch_scc1 {lb}")
        stamp_now(k)
        A(f"{lb}:")
    def stamp_now(k):
        A("s_memrealtime s[98:99]\ns_waitcnt lgkmcnt(0)")
        A(f"v_mov_b32 v238, s98\nv_mov_b32 v239, s99\ns_lshl_b32 s100, {S_WG}, 6\ns_add_u32 s100, s100, {ST_OFF + k*8}")
        A(f"s_mov_b64 s[98:99], exec\ns_mov_b64 exec, 1\nbuffer_store_dwordx2 v[238:239], off, {SRD_WS}, s100\ns_mov_b64 exec, s[98:99]")
    def srd(sr, lo, hi, size):
        b = int(sr[2:sr.index(":")])
        A(f"s_mov_b32 s{b}, {lo}\ns_mov_b32 s{b+1}, {hi}\ns_mov_b32 s{b+2}, 0x{size:x}\ns_mov_b32 s{b+3}, 0x20000")
    def issueK(slot, srdk, soff):
        for j in range(4):
            r = slotK(slot) + 4*j
            A(f"buffer_load_dwordx4 a[{r}:{r+3}], {V_KOFF}, {srdk}, {soff} offen offset:{j*64}{FLAGS[opt.get('kv', 1)]}")
    def issueV(slot, srdv, soff):
        for j in range(4):
            r = slotV(slot) + 4*j
            A(f"buffer_load_dwordx4 a[{r}:{r+3}], {V_VOFF}, {srdv}, {soff} offen offset:{j*256}{FLAGS[opt.get('kv', 1)]}")

    A(f"s_cmp_ge_u32 {S_WG}, 256\ns_cbranch_scc1 L_end")
    if stamps: A("s_memrealtime s[96:97]")
    A("s_load_dwordx16 s[64:79], s[0:1], 0")
    A("s_load_dwordx8 s[80:87], s[0:1], 64")
    A("s_load_dwordx2 s[88:89], s[0:1], 96")
    A(f"v_lshrrev_b32 {V_LANE}, 6, {V_TID}")
    A("s_nop 0")
    A(f"v_readfirstlane_b32 {S_WAVE}, {V_LANE}")
    A(f"v_and_b32 {V_LANE}, 63, {V_TID}")
    A(f"v_and_b32 {V_N}, 15, {V_LANE}")
    A(f"v_lshrrev_b32 {V_G}, 4, {V_LANE}")
    A(f"v_bfe_u32 v{TM}, {V_N}, 2, 1\nv_lshlrev_b32 v{TM}, 10, v{TM}\nv_lshl_add_u32 v{TM}, {V_G}, 3, v{TM}")
    A(f"v_lshlrev_b32 v{TM+1}, 15, {V_G}\nv_lshl_add_u32 v{TM+1}, {V_N}, 4, v{TM+1}")
    A(f"v_lshlrev_b32 {V_KOFF}, 8, {V_N}\nv_lshl_add_u32 {V_KOFF}, {V_G}, 4, {V_KOFF}")
    A(f"v_lshlrev_b32 {V_VOFF}, 10, {V_G}\nv_lshl_add_u32 {V_VOFF}, {V_N}, 4, {V_VOFF}")
    A(f"s_and_b32 {S_T0}, {S_WG}, 3")
    A(f"s_lshl_b32 {S_T1}, {S_T0}, 8\ns_lshl_b32 {S_T2}, {S_WAVE}, 6\ns_add_u32 {S_T3}, {S_T1}, {S_T2}")
    A(f"s_lshl_b32 {S_T1}, {S_T0}, 20\ns_lshl_b32 {S_T2}, {S_WAVE}, 18\ns_add_u32 {S_T1}, {S_T1}, {S_T2}")
    A(f"s_bfe_u32 {S_T2}, {S_WG}, 0x50002\ns_lshl_b32 {S_T2}, {S_T2}, 8\ns_add_u32 {S_T1}, {S_T1}, {S_T2}")
    A(f"s_and_b32 {S_OWN}, {S_WG}, 1\ns_lshl_b32 {S_OWN}, {S_OWN}, 7\ns_lshr_b32 {S_T2}, {S_WG}, 1\ns_or_b32 {S_OWN}, {S_OWN}, {S_T2}")
    A(f"s_lshl_b32 {S_BBASE}, {S_WG}, 20\ns_lshl_b32 {S_T2}, {S_WAVE}, 12\ns_add_u32 {S_OFF}, {S_BBASE}, {S_T2}")
    A("s_waitcnt lgkmcnt(0)")
    A(f"s_cmp_lt_u32 {S_WG}, 128")
    A("s_cselect_b32 s28, s70, s80\ns_cselect_b32 s29, s71, s81\ns_mov_b32 s30, 0x400000\ns_mov_b32 s31, 0x20000")
    A("s_cselect_b32 s32, s64, s74\ns_cselect_b32 s33, s65, s75\ns_mov_b32 s34, 0x800\ns_mov_b32 s35, 0x20000")
    for t in range(2):
        for rho in range(4):
            r = T0 + 16*t + 4*rho
            A(f"buffer_load_dwordx4 v[{r}:{r+3}], v{TM+1}, {SRD_WQ}, {S_T1} offen nt")
            if rho < 3: A(f"s_add_u32 {S_T1}, {S_T1}, 8192")
            elif t == 0: A(f"s_add_u32 {S_T1}, {S_T1}, {13*8192}")
    XR = T0 + 32
    A(f"buffer_load_dwordx2 v[{XR}:{XR+1}], v{TM}, {SRD_X}, {S_T3} offen")
    A(f"buffer_load_dwordx2 v[{XR+2}:{XR+3}], v{TM}, {SRD_X}, {S_T3} offen offset:32")
    srd(SRD_WS, "s88", "s89", 0x1000000)
    A(f"buffer_load_dword v{T0+40}, off, {SRD_WS}, 0 sc0 sc1")
    srd(SRD_KB, "s76", "s77", 0x10000000)
    srd(SRD_VB, "s78", "s79", 0x10000000)
    A("s_barrier")
    issueK(0, SRD_KB, S_OFF); issueV(0, SRD_VB, S_OFF)
    A(f"s_mov_b32 {S_IDX[0]}, 0")
    srd(SRD_KA, "s66", "s67", 0x4000000)
    srd(SRD_VA, "s68", "s69", 0x4000000)
    srd(SRD_OUT, "s84", "s85", 0x1000)
    A(f"s_cmp_lt_u32 {S_OWN}, 128")
    A("s_cselect_b32 s36, s72, s82\ns_cselect_b32 s37, s73, s83\ns_mov_b32 s38, 0x400000\ns_mov_b32 s39, 0x20000")
    A(f"v_and_b32 {V_TMP}, 3, {V_N}")
    for idx, (n_lo, lo, hi) in enumerate([(0, 0x0c0c0100, 0x01000c0c), (2, 0x0c0c0100, 0x01000c0c), (0, 0x0c0c0302, 0x03020c0c), (2, 0x0c0c0302, 0x03020c0c)]):
        v = f"v{V_SEL[idx]}"
        A(f"v_mov_b32 {v}, 0x0c0c0c0c")
        A(f"v_mov_b32 v{TM}, 0x{lo:08x}\nv_mov_b32 v{TM+1}, 0x{hi:08x}")
        A(f"v_cmp_eq_u32 vcc, {n_lo}, {V_TMP}\ns_nop 1\nv_cndmask_b32 {v}, {v}, v{TM}, vcc")
        A(f"v_cmp_eq_u32 vcc, {n_lo+1}, {V_TMP}\ns_nop 1\nv_cndmask_b32 {v}, {v}, v{TM+1}, vcc")
    A(f"v_lshrrev_b32 {V_DEP}, 2, {V_N}\nv_lshlrev_b32 {V_DEP}, 9, {V_DEP}")
    A(f"v_lshl_add_u32 {V_DEP}, {V_G}, 7, {V_DEP}\nv_lshl_add_u32 {V_DEP}, {V_TMP}, 2, {V_DEP}")
    A(f"s_lshl_b32 {S_T0}, {S_WAVE}, 11\nv_add_u32 {V_DEP}, {S_T0}, {V_DEP}")
    A(f"v_mov_b32 {V_CNTADDR}, {CNT}\nv_mov_b32 {V_ONE}, 1")
    A(f"s_mov_b32 {S_C}, 0x{f2u(CSCALE):08x}\ns_mov_b32 {S_SC}, 0x{f2u(SSCALE):08x}")
    A(f"s_lshr_b32 {S_T1}, {S_WG}, 4\ns_lshl_b32 {S_T1}, {S_T1}, 22\ns_add_u32 {S_T1}, {S_T1}, 0x300000")
    A(f"s_and_b32 {S_T2}, {S_WG}, 15\ns_lshl_b32 {S_T3}, {S_T2}, 16\ns_add_u32 {S_ABASE}, {S_T1}, {S_T3}")
    A(f"s_mul_i32 {S_A0}, {S_T2}, {A0STEP}\ns_add_u32 {S_A0}, {S_A0}, {A0BASE}")
    A(f"s_mov_b32 {S_RET}, 0\ns_mov_b32 {S_PH}, 0\ns_mov_b32 {S_QA}, 0\ns_add_u32 {S_AEND}, {S_A0}, 16\ns_mov_b32 {S_LASTG}, 0")
    for kd in (KB_, KA_):
        A(f"v_mov_b32 {kd['M']}, 0x{f2u(NEG):08x}\nv_mov_b32 {kd['MC']}, 0x{f2u(NEG):08x}\nv_mov_b32 {kd['L']}, 0")
    for i in range(8): A(f"v_mov_b32 v{KA_['O']+i}, 0")
    lb = g.label("zc")
    A(f"s_cmp_lg_u32 {S_WAVE}, 0\ns_cbranch_scc1 {lb}")
    A(f"v_mov_b32 v{TM}, {(NS+XS)*NW}\nv_mov_b32 v{TM+1}, 0\nv_mov_b32 v{TM+2}, 0\nv_mov_b32 v{TM+3}, 0")
    A(f"s_mov_b64 exec, 1\nds_write_b128 {V_CNTADDR}, v[{TM}:{TM+3}]\nds_write_b32 {V_CNTADDR}, v{TM+1} offset:16\ns_mov_b64 exec, -1")
    A(f"{lb}:")
    if stamps:
        lb = g.label("st")
        A(f"s_cmp_lg_u32 {S_WAVE}, 0\ns_cbranch_scc1 {lb}")
        A(f"v_mov_b32 v238, s96\nv_mov_b32 v239, s97\ns_lshl_b32 s100, {S_WG}, 6\ns_add_u32 s100, s100, {ST_OFF}")
        A(f"s_mov_b64 exec, 1\nbuffer_store_dwordx2 v[238:239], off, {SRD_WS}, s100\ns_mov_b64 exec, -1")
        A(f"{lb}:")
    OB_ = KB_['O']
    for i in range(8): A(f"v_mov_b32 v{OB_+i}, 0")
    A("s_waitcnt vmcnt(8)")
    A(f"v_readfirstlane_b32 {S_TAG}, v{T0+40}")
    def diag(tt=TT):
        for rho in range(4):
            src = tt + (rho >> 1); hi = rho & 1
            A(f"v_perm_b32 v{X0+2*rho}, v{src}, v{src}, v{V_SEL[0+2*hi]}")
            A(f"v_perm_b32 v{X0+2*rho+1}, v{src}, v{src}, v{V_SEL[1+2*hi]}")
    def dmfma(acc, areg):
        for rho in range(4):
            for u in range(2):
                A(f"v_mfma_f32_16x16x16_bf16 v[{acc+4*u}:{acc+4*u+3}], {areg(rho,u)}, v[{X0+2*rho}:{X0+2*rho+1}], v[{acc+4*u}:{acc+4*u+3}]")
    vop = lambda base: (lambda rho, u: f"v[{base+4*rho+2*u}:{base+4*rho+2*u+1}]")
    aop = lambda base: (lambda rho, u: f"a[{base+4*rho+2*u}:{base+4*rho+2*u+1}]")
    diag(XR)
    A(f"s_add_u32 {S_TAG}, {S_TAG}, 0x{TAGINC:08x}")
    A("s_nop 0")
    dmfma(OB_, vop(T0))
    A("s_nop 1")
    diag(XR+2)
    A("s_nop 1")
    dmfma(OB_, vop(T0+16))
    A("s_nop 7\ns_nop 1")
    def deposit(area, acc):
        for u in range(2):
            for rp in range(4):
                A(f"ds_write_b32 {V_DEP}, v{acc+4*u+rp} offset:{area + rp*32 + u*16}")
    deposit(DQ, OB_)
    A("s_waitcnt lgkmcnt(0)\ns_barrier")
    A(f"v_lshlrev_b32 v{TM}, 2, {V_TID}")
    for k in range(NW): A(f"ds_read_b32 v{T0+k}, v{TM} offset:{DQ + k*2048}")
    A("s_waitcnt lgkmcnt(0)")
    A(f"v_add_f32 v{T0}, v{T0}, v{T0+1}\nv_add_f32 v{T0+2}, v{T0+2}, v{T0+3}\nv_add_f32 v{T0}, v{T0}, v{T0+2}")
    A(f"v_mov_b32 v{T0+1}, {S_TAG}")
    A(f"v_lshlrev_b32 v{TM}, 3, {V_TID}")
    A(f"s_lshl_b32 {S_T1}, {S_WG}, 11\ns_add_u32 {S_T1}, {S_T1}, {QP_OFF}")
    A(f"buffer_store_dwordx2 v[{T0}:{T0+1}], v{TM}, {SRD_WS}, {S_T1} offen sc0 sc1")
    if not tst: stamp(1)
    for i in range(8): A(f"v_mov_b32 v{OB_+i}, 0")
    def check_tags(tagregs):
        acc = V_TMP
        A(f"v_xor_b32 {acc}, {S_TAG}, v{tagregs[0]}")
        for t in tagregs[1:]:
            A(f"v_xor_b32 v{t}, {S_TAG}, v{t}\nv_or_b32 {acc}, {acc}, v{t}")
        A(f"v_cmp_ne_u32 vcc, 0, {acc}")
    def poll(loads, tagregs, name, sleep=1, pre_issued_wait=None):
        l_top = g.label(name); l_ok = g.label(name + "ok"); l_chk = g.label(name + "chk")
        A(f"s_mov_b32 {S_CNT}, 0")
        if pre_issued_wait is not None:
            A(f"s_waitcnt vmcnt({pre_issued_wait})\ns_branch {l_chk}")
        A(f"{l_top}:")
        for s in loads: A(s)
        A("s_waitcnt vmcnt(0)")
        A(f"{l_chk}:")
        check_tags(tagregs)
        A(f"s_cbranch_vccz {l_ok}")
        A(f"s_add_u32 {S_CNT}, {S_CNT}, 1\ns_cmp_lt_u32 {S_CNT}, 0x40000\ns_cbranch_scc0 {l_ok}")
        A(f"s_sleep {sleep}\ns_branch {l_top}")
        A(f"{l_ok}:")
    A(f"v_and_b32 v{TM+1}, 127, {V_TID}\nv_lshlrev_b32 v{TM+1}, 3, v{TM+1}")
    A(f"s_bfe_u32 {S_T3}, {S_WG}, 0x50002\ns_lshl_b32 {S_T3}, {S_T3}, 13")
    A(f"s_lshr_b32 {S_T4}, {S_WG}, 7\ns_lshl_b32 {S_T4}, {S_T4}, 10\ns_add_u32 {S_T3}, {S_T3}, {S_T4}")
    A(f"s_add_u32 {S_T3}, {S_T3}, {QP_OFF + 128*2048}\ns_add_u32 {S_T4}, {S_T3}, 4096")
    loadsB = [f"buffer_load_dwordx2 v[{T0+16+2*dq}:{T0+16+2*dq+1}], v{TM+1}, {SRD_WS}, {S_T3 if dq<2 else S_T4} offen offset:{(dq&1)*2048} sc0 sc1" for dq in range(4)]
    tagsB = [T0+17, T0+19, T0+21, T0+23]
    A(f"v_lshrrev_b32 {V_QAOFF}, 7, {V_TID}\nv_lshlrev_b32 {V_QAOFF}, 13, {V_QAOFF}\nv_add_u32 {V_QAOFF}, {V_QAOFF}, v{TM+1}")
    A(f"s_bfe_u32 {S_T1}, {S_WG}, 0x30004\ns_lshl_b32 {S_T1}, {S_T1}, 15")
    A(f"s_lshr_b32 {S_T2}, {S_WG}, 7\ns_lshl_b32 {S_T2}, {S_T2}, 10\ns_add_u32 {S_T1}, {S_T1}, {S_T2}")
    A(f"s_add_u32 s92, {S_T1}, {QP_OFF}\ns_add_u32 s93, s92, 4096\ns_add_u32 s94, s92, 16384\ns_add_u32 s95, s92, 20480")
    loadsA = []; tagsA = []
    for h in range(2):
        for dq in range(4):
            r = T0 + 8*h + 2*dq
            loadsA.append(f"buffer_load_dwordx2 v[{r}:{r+1}], {V_QAOFF}, {SRD_WS}, s{92 + 2*h + (dq >> 1)} offen offset:{(dq&1)*2048} sc0 sc1")
            tagsA.append(r+1)
    def issue_first(s):
        A(f"s_add_u32 {S_OFF}, {S_OFF}, {NW*4096}\ns_mov_b32 {S_IDX[s]}, 0")
        issueK(s, SRD_KB, S_OFF); issueV(s, SRD_VB, S_OFF)
    A(f"s_cmp_ge_u32 {S_WAVE}, 2\ns_cselect_b32 {S_RET}, 1, 0")
    issue_first(1)
    for s in range(2, NS+XS):
        l1 = g.label("qi"); l2 = g.label("qj")
        A(f"s_cmp_lg_u32 {S_RET}, 0\ns_cbranch_scc1 {l1}")
        for x in loadsB: A(x)
        A(f"{l1}:")
        issue_first(s)
        A(f"s_cmp_lg_u32 {S_RET}, 0\ns_cbranch_scc1 {l2}")
        A("s_waitcnt vmcnt(8)")
        check_tags(tagsB)
        A(f"s_cbranch_vccnz {l2}")
        A(f"s_mov_b32 {S_RET}, 2")
        A(f"{l2}:")
    lo = g.label("qfo"); lbq2 = g.label("qw2")
    A(f"s_cmp_eq_u32 {S_RET}, 1\ns_cbranch_scc1 {lbq2}")
    A(f"s_cmp_eq_u32 {S_RET}, 2\ns_cbranch_scc1 {lo}")
    poll(loadsB, tagsB, "qb", sleep=2)
    A(f"{lo}:")
    r = T0 + 16
    A(f"v_add_f32 v{r}, v{r}, v{r+2}\nv_add_f32 v{r+4}, v{r+4}, v{r+6}\nv_add_f32 v{r}, v{r}, v{r+4}")
    A(f"v_cvt_pk_bf16_f32 v{r}, v{r}, v{r}")
    A(f"v_lshlrev_b32 v{TM+2}, 1, {V_TID}")
    A(f"ds_write_b16 v{TM+2}, v{r} offset:{QL + 1024}")
    A(f"{lbq2}:")
    A(f"s_mov_b32 {S_RET}, 0")
    A("s_waitcnt lgkmcnt(0)\ns_barrier")
    if not tst: stamp(2)
    A(f"v_lshlrev_b32 v{TM}, 4, {V_G}")
    for j in range(4): A(f"ds_read_b128 v[{KB_['Q']+4*j}:{KB_['Q']+4*j+3}], v{TM} offset:{QL + 1024 + j*64}")
    A("s_waitcnt lgkmcnt(0)")

    WO = T0
    def wo_tile(t):
        A(f"v_lshlrev_b32 v{TM+3}, 12, {V_G}\nv_lshl_add_u32 v{TM+3}, {V_N}, 4, v{TM+3}")
        A(f"s_bfe_u32 {S_T0}, {S_OWN}, 0x50002\ns_lshl_b32 {S_T0}, {S_T0}, 17\ns_lshl_b32 {S_T1}, {S_WAVE}, 15\ns_add_u32 {S_T0}, {S_T0}, {S_T1}")
        A(f"s_and_b32 {S_T1}, {S_OWN}, 3\ns_lshl_b32 {S_T1}, {S_T1}, 8\ns_add_u32 {S_T0}, {S_T0}, {S_T1}\ns_add_u32 {S_T0}, {S_T0}, {16384*t}")
        for rho in range(4):
            r = WO + 16*t + 4*rho
            A(f"buffer_load_dwordx4 v[{r}:{r+3}], v{TM+3}, {SRD_WO}, {S_T0} offen offset:{rho*1024} nt")
    ool = []
    def compute(slot, kd, isA, refill=True, wk=None, wv=None):
        sidx = S_IDX[slot]
        K = slotK(slot); V = slotV(slot)
        Q = kd['Q']; O = kd['O']; VM = kd['M']; VMC = kd['MC']; VL = kd['L']
        if wk is None: wk = W
        if wv is None: wv = W
        if refill: A(f"s_mov_b64 exec, 1\nds_add_rtn_u32 {V_GRAB}, {V_CNTADDR}, {V_ONE}\ns_mov_b64 exec, -1")
        A(f"s_waitcnt vmcnt({wk})")
        for j in range(4):
            c = "0" if j == 0 else f"v[{S0}:{S0+3}]"
            A(f"v_mfma_f32_16x16x32_bf16 v[{S0}:{S0+3}], a[{K+4*j}:{K+4*j+3}], v[{Q+4*j}:{Q+4*j+3}], {c}")
        lra = g.label("refA"); lri = g.label("refI"); lk = g.label("afterK"); lkn = g.label("normK"); lvx = g.label("vx"); lvr = g.label("afterV")
        if refill:
            A("s_waitcnt lgkmcnt(0)")
            A(f"v_readfirstlane_b32 {sidx}, {V_GRAB}")
            A("s_nop 3")
            A(f"s_mov_b32 {S_LASTG}, {sidx}")
            A(f"s_sub_u32 {S_T0}, {sidx}, {S_A0}\ns_cmp_lt_u32 {S_T0}, 16\ns_cbranch_scc1 {lra}")
            A(f"s_cmp_ge_u32 {sidx}, {NT}\ns_cbranch_scc1 {lri}")
            A(f"s_cmp_ge_u32 {sidx}, {S_A0}\ns_cselect_b32 {S_T0}, 16, 0\ns_sub_u32 {S_T0}, {sidx}, {S_T0}\ns_lshl_b32 {S_T0}, {S_T0}, 12\ns_add_u32 {S_OFF}, {S_BBASE}, {S_T0}")
            A(f"{lkn}:")
            issueK(slot, SRD_KB, S_OFF)
            A(f"{lk}:")
        else:
            A("s_nop 7\ns_nop 1")
        for rnd in range(2):
            A(f"v_cvt_pk_bf16_f32 v{TM}, v{S0}, v{S0+1}\nv_cvt_pk_bf16_f32 v{TM+1}, v{S0+2}, v{S0+3}")
            A(f"v_lshlrev_b32 v{S0}, 16, v{TM}\nv_and_b32 v{S0+1}, 0xffff0000, v{TM}\nv_lshlrev_b32 v{S0+2}, 16, v{TM+1}\nv_and_b32 v{S0+3}, 0xffff0000, v{TM+1}")
            if rnd == 0:
                for i in range(4): A(f"v_mul_f32 v{S0+i}, {S_SC}, v{S0+i}")
        A(f"v_max3_f32 v{TM}, v{S0}, v{S0+1}, v{S0+2}\nv_max_f32 v{TM}, v{TM}, v{S0+3}")
        A(f"v_cmp_gt_f32 vcc, v{TM}, {VM}")
        lf = g.label("fast")
        A(f"s_cbranch_vccz {lf}")
        A(f"v_mov_b32 v{TM+1}, v{TM}\ns_nop 1\nv_permlane32_swap_b32 v{TM+1}, v{TM}\ns_nop 1\nv_max_f32 v{TM}, v{TM}, v{TM+1}")
        A(f"v_mov_b32 v{TM+1}, v{TM}\ns_nop 1\nv_permlane16_swap_b32 v{TM+1}, v{TM}\ns_nop 1\nv_max_f32 v{TM}, v{TM}, v{TM+1}")
        A(f"v_max_f32 {VM}, {VM}, v{TM}")
        A(f"v_mul_f32 v{TM+1}, {S_C}, {VM}")
        A(f"v_sub_f32 v{TM+2}, {VMC}, v{TM+1}")
        A(f"v_exp_f32 v{TM+2}, v{TM+2}")
        A(f"v_mov_b32 {VMC}, v{TM+1}")
        A(f"v_mul_f32 {VL}, {VL}, v{TM+2}")
        for i in range(8): A(f"v_mul_f32 v{O+i}, v{O+i}, v{TM+2}")
        A(f"{lf}:")
        for i in range(4): A(f"v_fma_f32 v{P0+i}, v{S0+i}, {S_C}, -{VMC}")
        for i in range(4): A(f"v_exp_f32 v{P0+i}, v{P0+i}")
        A("s_nop 0")
        A(f"v_cvt_pk_bf16_f32 v{TT}, v{P0}, v{P0+1}\nv_cvt_pk_bf16_f32 v{TT+1}, v{P0+2}, v{P0+3}")
        A(f"v_add_f32 v{P0}, v{P0}, v{P0+1}\nv_add_f32 v{P0+2}, v{P0+2}, v{P0+3}")
        diag()
        A(f"v_add_f32 {VL}, {VL}, v{P0}\nv_add_f32 {VL}, {VL}, v{P0+2}")
        A(f"s_waitcnt vmcnt({wv})")
        dmfma(O, aop(V))
        if not refill: return
        A(f"s_cmp_ge_u32 {sidx}, 0x{ATYPE:x}\ns_cbranch_scc1 {lvx}")
        A(f"{lvr}_n:")
        issueV(slot, SRD_VB, S_OFF)
        A(f"{lvr}:")
        def emit():
            A(f"{lra}:")
            A(f"s_lshl_b32 {S_T0}, {S_T0}, 12\ns_add_u32 {S_OFF}, {S_ABASE}, {S_T0}\ns_mov_b32 {sidx}, 0x{ATYPE:x}")
            issueK(slot, SRD_KA, S_OFF)
            A(f"s_branch {lk}")
            A(f"{lri}:")
            A(f"s_mov_b32 {sidx}, 0x{INVALID:x}\ns_mov_b32 {S_OFF}, 0x7ff00000")
            A(f"s_cmp_lg_u32 {S_RET}, 0\ns_cbranch_scc1 {lkn}")
            A(f"s_mov_b32 {S_RET}, 1")
            wo_tile(0)
            A(f"s_branch {lk}")
            A(f"{lvx}:")
            A(f"s_cmp_ge_u32 {sidx}, 0x{INVALID:x}\ns_cbranch_scc1 {lvx}_i")
            issueV(slot, SRD_VA, S_OFF)
            A(f"s_branch {lvr}")
            A(f"{lvx}_i:")
            A(f"s_cmp_lg_u32 {S_RET}, 1\ns_cbranch_scc1 {lvr}_n")
            A(f"s_mov_b32 {S_RET}, 2")
            wo_tile(1)
            A(f"s_branch {lvr}")
        ool.append(emit)

    def compute_typed(slot):
        la = g.label("cA"); lr = g.label("cR")
        A(f"s_bitcmp1_b32 {S_IDX[slot]}, 12\ns_cbranch_scc1 {la}")
        compute(slot, KB_, False)
        A(f"{lr}:")
        def emit():
            lq = g.label("qa"); lsp = g.label("qsp")
            A(f"{la}:")
            A(f"s_cmp_lg_u32 {S_QA}, 0\ns_cbranch_scc1 {lq}")
            A(f"s_mov_b32 {S_CNT}, 0")
            A(f"{lsp}:")
            A(f"ds_read_b32 v{TM}, {V_CNTADDR} offset:16\ns_waitcnt lgkmcnt(0)\nv_readfirstlane_b32 {S_T0}, v{TM}\ns_add_u32 {S_CNT}, {S_CNT}, 1")
            A(f"s_cmp_ge_u32 {S_CNT}, 0x400000\ns_cbranch_scc1 {lsp}_x")
            A(f"s_cmp_lt_u32 {S_T0}, {NW}\ns_cbranch_scc1 {lsp}")
            A(f"{lsp}_x:")
            A(f"v_lshrrev_b32 v{TM}, 2, {V_N}\nv_lshlrev_b32 v{TM}, 8, v{TM}\nv_lshl_add_u32 v{TM}, {V_G}, 4, v{TM}")
            for j in range(4): A(f"ds_read_b128 v[{KA_['Q']+4*j}:{KA_['Q']+4*j+3}], v{TM} offset:{QL + j*64}")
            A(f"s_waitcnt lgkmcnt(0)\ns_mov_b32 {S_QA}, 1")
            A(f"{lq}:")
            compute(slot, KA_, True)
            A(f"s_branch {lr}")
        ool.append(emit)

    def flush(area, mlarea, cntoff, isA):
        kd = KA_ if isA else KB_
        VL = kd['L']; VMC = kd['MC']
        A(f"v_mov_b32 v{TM+1}, {VL}\ns_nop 1\nv_permlane32_swap_b32 v{TM+1}, {VL}\ns_nop 1\nv_add_f32 {VL}, {VL}, v{TM+1}")
        A(f"v_mov_b32 v{TM+1}, {VL}\ns_nop 1\nv_permlane16_swap_b32 v{TM+1}, {VL}\ns_nop 1\nv_add_f32 {VL}, {VL}, v{TM+1}")
        A("s_nop 7")
        deposit(area, kd['O'])
        A(f"v_lshrrev_b32 v{TM}, 2, {V_N}\nv_lshlrev_b32 v{TM}, 3, v{TM}\ns_lshl_b32 {S_T0}, {S_WAVE}, 5\nv_add_u32 v{TM}, {S_T0}, v{TM}")
        A(f"v_mov_b32 v{TM+2}, {VMC}\nv_mov_b32 v{TM+3}, {VL}")
        A(f"ds_write_b64 v{TM}, v[{TM+2}:{TM+3}] offset:{mlarea}")
        A("s_waitcnt lgkmcnt(0)")
        A(f"s_mov_b64 exec, 1\nds_add_rtn_u32 v{TM}, {V_CNTADDR}, {V_ONE} offset:{cntoff}\ns_mov_b64 exec, -1")
        A("s_waitcnt lgkmcnt(0)")
        A(f"v_readfirstlane_b32 {S_T0}, v{TM}")
        lb = g.label("nomerge")
        A("s_nop 3")
        A(f"s_cmp_lg_u32 {S_T0}, {NW-1}\ns_cbranch_scc1 {lb}")
        ns = 4 if isA else 1
        MB = T0 + 32
        A(f"v_and_b32 v{TM}, 3, {V_LANE}\nv_lshlrev_b32 v{TM}, 3, v{TM}")
        for k in range(NW): A(f"ds_read_b64 v[{MB+2*k}:{MB+2*k+1}], v{TM} offset:{mlarea + k*32}")
        A(f"v_lshlrev_b32 v{TM+1}, 3, {V_LANE}")
        OB = T0 + 44
        for sl in range(ns):
            for k in range(NW):
                r = OB + 8*sl + 2*k
                A(f"ds_read_b64 v[{r}:{r+1}], v{TM+1} offset:{area + k*2048 + sl*512}")
        A(f"s_waitcnt lgkmcnt({min(15, NW*ns)})")
        M = T0 + 40; Ls = T0 + 42
        if NW*ns > 15: A("s_waitcnt lgkmcnt(12)")
        A(f"v_max3_f32 v{M}, v{MB}, v{MB+2}, v{MB+4}\nv_max_f32 v{M}, v{M}, v{MB+6}")
        for k in range(NW): A(f"v_sub_f32 v{MB+2*k}, v{MB+2*k}, v{M}")
        for k in range(NW): A(f"v_exp_f32 v{MB+2*k}, v{MB+2*k}")
        A("s_nop 0")
        A(f"v_mul_f32 v{Ls}, v{MB}, v{MB+1}")
        for k in range(1, NW): A(f"v_fmac_f32 v{Ls}, v{MB+2*k}, v{MB+2*k+1}")
        A(f"v_mov_b32 v{M+1}, {S_TAG}\nv_mov_b32 v{Ls+1}, {S_TAG}")
        for sl in range(ns):
            for k in range(NW): A(f"v_readlane_b32 s{64+4*sl+k}, v{MB+2*k}, {sl}")
        A("s_waitcnt lgkmcnt(0)")
        GB = T0 + 76
        for sl in range(ns):
            r = OB + 8*sl
            A(f"v_mul_f32 v{GB+4*sl}, s{64+4*sl}, v{r}\nv_mul_f32 v{GB+4*sl+2}, s{64+4*sl}, v{r+1}")
            for k in range(1, NW):
                A(f"v_fmac_f32 v{GB+4*sl}, s{64+4*sl+k}, v{r+2*k}\nv_fmac_f32 v{GB+4*sl+2}, s{64+4*sl+k}, v{r+2*k+1}")
            A(f"v_mov_b32 v{GB+4*sl+1}, {S_TAG}\nv_mov_b32 v{GB+4*sl+3}, {S_TAG}")
        if isA:
            A(f"s_mul_i32 {S_T0}, {S_WG}, {4*REC}\ns_add_u32 {S_T0}, {S_T0}, {RA_OFF}")
        else:
            A(f"s_mul_i32 {S_T0}, {S_WG}, {REC}\ns_add_u32 {S_T0}, {S_T0}, {RB_OFF}")
        A(f"v_lshlrev_b32 v{TM+1}, 4, {V_LANE}")
        for sl in range(ns):
            A(f"buffer_store_dwordx4 v[{GB+4*sl}:{GB+4*sl+3}], v{TM+1}, {SRD_WS}, {S_T0} offen offset:{sl*1024} sc0 sc1")
        A(f"s_add_u32 {S_T0}, {S_T0}, {ns*1024}")
        A(f"s_mov_b64 exec, 15")
        A(f"buffer_store_dwordx4 v[{M}:{M+3}], v{TM+1}, {SRD_WS}, {S_T0} offen sc0 sc1")
        A("s_mov_b64 exec, -1")
        if stamps and tst and not isA: stamp_now(1)
        A(f"{lb}:")

    def final_stage():
        A(f"v_lshrrev_b32 v{TM}, 1, {V_LANE}\nv_lshlrev_b32 v{TM}, 11, v{TM}\nv_and_b32 v{TM+1}, 1, {V_LANE}\nv_lshl_add_u32 v{TM}, v{TM+1}, 10, v{TM}")
        A(f"s_lshr_b32 {S_T0}, {S_OWN}, 7\ns_lshl_b32 {S_T0}, {S_T0}, 2\ns_and_b32 {S_T1}, {S_OWN}, 3\ns_add_u32 {S_T0}, {S_T0}, {S_T1}\ns_lshl_b32 {S_T0}, {S_T0}, 16")
        A(f"s_bfe_u32 {S_T1}, {S_OWN}, 0x50002\ns_lshl_b32 {S_T1}, {S_T1}, 5\ns_add_u32 {S_T0}, {S_T0}, {S_T1}\ns_add_u32 {S_T0}, {S_T0}, {YP_OFF}")
        F = T0 + 32
        loads = [f"buffer_load_dwordx4 v[{F}:{F+3}], v{TM}, {SRD_WS}, {S_T0} offen sc0 sc1",
                 f"buffer_load_dwordx4 v[{F+4}:{F+7}], v{TM}, {SRD_WS}, {S_T0} offen offset:16 sc0 sc1"]
        poll(loads, [F+1, F+3, F+5, F+7], "yp", sleep=1)
        ys = [F, F+2, F+4, F+6]
        for rr in (2, 4, 8):
            for y in ys: A(f"v_add_f32_dpp v{y}, v{y}, v{y} row_ror:{rr} row_mask:0xf bank_mask:0xf")
        for sw in ("v_permlane16_swap_b32", "v_permlane32_swap_b32"):
            for y in ys: A(f"v_mov_b32 v{y+1}, v{y}")
            A("s_nop 1")
            for y in ys: A(f"{sw} v{y+1}, v{y}")
            A("s_nop 1")
            for y in ys: A(f"v_add_f32 v{y}, v{y}, v{y+1}")
        A(f"v_cvt_pk_bf16_f32 v{F+8}, v{F}, v{F+2}\nv_cvt_pk_bf16_f32 v{F+9}, v{F+4}, v{F+6}")
        A(f"v_lshlrev_b32 v{TM+1}, 11, v{TM+1}")
        A(f"s_lshr_b32 {S_T0}, {S_OWN}, 7\ns_lshl_b32 {S_T0}, {S_T0}, 10\ns_and_b32 {S_T1}, {S_OWN}, 3\ns_lshl_b32 {S_T1}, {S_T1}, 8\ns_add_u32 {S_T0}, {S_T0}, {S_T1}")
        A(f"s_bfe_u32 {S_T1}, {S_OWN}, 0x50002\ns_lshl_b32 {S_T1}, {S_T1}, 3\ns_add_u32 {S_T0}, {S_T0}, {S_T1}")
        A("s_mov_b64 exec, 3")
        A(f"buffer_store_dwordx2 v[{F+8}:{F+9}], v{TM+1}, {SRD_OUT}, {S_T0} offen")
        A("s_mov_b64 exec, -1")

    RB0 = T0 + 96; OV0 = T0 + 136; OV1 = T0 + 137
    YA = T0 + 76; RM = T0 + 84; RL = T0 + 85; RO = T0 + 86
    def owner_loads(isA):
        nrec = 2 if isA else 1
        loads = []; tags = []
        for r in range(nrec):
            b = RB0 + 20*r
            so = "s92" if r == 0 else "s94"; sm = "s93" if r == 0 else "s95"
            for t in range(2):
                loads.append(f"buffer_load_dwordx4 v[{b+8*t}:{b+8*t+3}], v{OV1}, {SRD_WS}, {so} offen offset:{128*t} sc0 sc1")
                loads.append(f"buffer_load_dwordx4 v[{b+8*t+4}:{b+8*t+7}], v{OV1}, {SRD_WS}, {so} offen offset:{128*t+16} sc0 sc1")
            loads.append(f"buffer_load_dwordx4 v[{b+16}:{b+19}], v{OV0}, {SRD_WS}, {sm} offen sc0 sc1")
            tags += [b+1+2*i for i in range(10)]
        return loads, tags
    def owner_addr(isA):
        A(f"s_bfe_u32 {S_T0}, {S_OWN}, 0x50002")
        if isA:
            A(f"s_lshr_b32 {S_T1}, {S_T0}, 2\ns_mul_i32 {S_REC}, {S_T1}, {16*4*REC}\ns_add_u32 {S_REC}, {S_REC}, {RA_OFF}")
            A(f"s_and_b32 {S_T2}, {S_T0}, 3")
            stride = 4*REC; bstr = 8*16*4*REC
        else:
            A(f"s_mul_i32 {S_REC}, {S_T0}, {4*REC}\ns_add_u32 {S_REC}, {S_REC}, {RB_OFF}")
            stride = REC; bstr = 32*4*REC
        A(f"s_mov_b32 {S_T3}, {bstr}")
        A(f"v_bfe_u32 v{OV0}, {V_N}, 2, 1\nv_mul_lo_u32 v{OV0}, v{OV0}, {S_T3}")
        A(f"v_and_b32 v{TM}, 3, {V_N}")
        if isA:
            A(f"v_lshrrev_b32 v{TM+1}, 3, {V_N}\nv_lshl_add_u32 v{TM}, v{TM+1}, 2, v{TM}\nv_lshlrev_b32 v{TM}, 1, v{TM}")
        A(f"s_mov_b32 {S_T3}, {stride}\nv_mul_lo_u32 v{TM}, v{TM}, {S_T3}\nv_add_u32 v{OV0}, v{OV0}, v{TM}")
        A(f"v_lshl_add_u32 v{OV1}, {V_G}, 5, v{OV0}")
        A(f"s_lshl_b32 {S_T1}, {S_WAVE}, 8")
        if isA:
            A(f"s_lshl_b32 {S_T3}, {S_T2}, 10\ns_add_u32 s92, {S_REC}, {S_T1}\ns_add_u32 s92, s92, {S_T3}")
            A(f"s_lshl_b32 {S_T3}, {S_T2}, 4\ns_add_u32 s93, {S_REC}, {S_T3}\ns_add_u32 s93, s93, 4096")
            A(f"s_add_u32 s94, s92, {stride}\ns_add_u32 s95, s93, {stride}")
        else:
            A(f"s_add_u32 s92, {S_REC}, {S_T1}\ns_add_u32 s93, {S_REC}, 1024")
    def owner_consume(isA, ret_label):
        b0 = RB0; b1 = RB0 + 20
        oreg = lambda b, i: b + 8*(i >> 2) + 2*(i & 3)
        if isA:
            A(f"v_max_f32 v{RM}, v{b0+16}, v{b1+16}")
            A(f"v_sub_f32 v{b0+16}, v{b0+16}, v{RM}\nv_sub_f32 v{b1+16}, v{b1+16}, v{RM}")
            A(f"v_exp_f32 v{b0+16}, v{b0+16}\nv_exp_f32 v{b1+16}, v{b1+16}")
            A("s_nop 0")
            A(f"v_mul_f32 v{RL}, v{b0+16}, v{b0+18}\nv_fmac_f32 v{RL}, v{b1+16}, v{b1+18}")
            for i in range(8):
                A(f"v_mul_f32 v{RO+i}, v{b0+16}, v{oreg(b0,i)}\nv_fmac_f32 v{RO+i}, v{b1+16}, v{oreg(b1,i)}")
        else:
            A(f"v_mov_b32 v{RM}, v{b0+16}\nv_mov_b32 v{RL}, v{b0+18}")
            for i in range(8): A(f"v_mov_b32 v{RO+i}, v{oreg(b0,i)}")
        steps = ["quad_perm:[1,0,3,2]", "quad_perm:[2,3,0,1]"] + (["row_ror:8"] if isA else [])
        MA = TM + 2
        A(f"v_mov_b32 v{MA}, v{RM}")
        for st in steps:
            A("s_nop 1")
            A(f"v_max_f32_dpp v{MA}, v{MA}, v{MA} {st} row_mask:0xf bank_mask:0xf")
        A(f"v_sub_f32 v{RM}, v{RM}, v{MA}")
        A(f"v_exp_f32 v{RM}, v{RM}")
        A("s_nop 0")
        vals = [RL] + [RO+i for i in range(8)]
        for v in vals: A(f"v_mul_f32 v{v}, v{v}, v{RM}")
        for st in steps:
            for v in vals: A(f"v_add_f32_dpp v{v}, v{v}, v{v} {st} row_mask:0xf bank_mask:0xf")
        A(f"v_rcp_f32 v{RL}, v{RL}")
        A("s_nop 0")
        for i in range(8): A(f"v_mul_f32 v{RO+i}, v{RO+i}, v{RL}")
        for i in range(8): A(f"v_mov_b32 v{YA+i}, 0")
        for t in range(2):
            A(f"v_cvt_pk_bf16_f32 v{TT}, v{RO+4*t}, v{RO+4*t+1}\nv_cvt_pk_bf16_f32 v{TT+1}, v{RO+4*t+2}, v{RO+4*t+3}")
            diag()
            A("s_nop 1")
            dmfma(YA, vop(WO + 16*t))
            A("s_nop 1")
        A("s_nop 7\ns_nop 1")
        deposit(DY, YA)
        if tst and not isA: stamp(3)
        A("s_waitcnt lgkmcnt(0)")
        A(f"s_mov_b64 exec, 1\nds_add_rtn_u32 v{TM}, {V_CNTADDR}, {V_ONE} offset:12\ns_mov_b64 exec, -1")
        A("s_waitcnt lgkmcnt(0)")
        A(f"v_readfirstlane_b32 {S_T0}, v{TM}")
        A("s_nop 3")
        A(f"s_cmp_lg_u32 {S_T0}, {NW-1}\ns_cbranch_scc1 {ret_label}")
        A(f"v_lshlrev_b32 v{TM}, 3, {V_LANE}")
        Y = T0 + 32
        for i in range(2):
            for k in range(NW): A(f"ds_read_b64 v[{Y+8*i+2*k}:{Y+8*i+2*k+1}], v{TM} offset:{DY + k*2048 + i*512}")
        A("s_waitcnt lgkmcnt(0)")
        G_ = T0 + 52
        for i in range(2):
            r = Y + 8*i
            A(f"v_add_f32 v{r}, v{r}, v{r+2}\nv_add_f32 v{r+1}, v{r+1}, v{r+3}\nv_add_f32 v{r+4}, v{r+4}, v{r+6}\nv_add_f32 v{r+5}, v{r+5}, v{r+7}")
            A(f"v_add_f32 v{G_+4*i}, v{r}, v{r+4}\nv_add_f32 v{G_+4*i+2}, v{r+1}, v{r+5}")
            A(f"v_mov_b32 v{G_+4*i+1}, {S_TAG}\nv_mov_b32 v{G_+4*i+3}, {S_TAG}")
        A(f"v_lshlrev_b32 v{TM}, 4, {V_LANE}")
        A(f"s_lshr_b32 {S_T0}, {S_OWN}, 7\ns_lshl_b32 {S_T0}, {S_T0}, 2\ns_and_b32 {S_T1}, {S_OWN}, 3\ns_add_u32 {S_T0}, {S_T0}, {S_T1}\ns_lshl_b32 {S_T0}, {S_T0}, 16")
        A(f"s_bfe_u32 {S_T1}, {S_OWN}, 0x50002\ns_lshl_b32 {S_T1}, {S_T1}, 11\ns_add_u32 {S_T0}, {S_T0}, {S_T1}\ns_add_u32 {S_T0}, {S_T0}, {YP_OFF}")
        A(f"buffer_store_dwordx4 v[{G_}:{G_+3}], v{TM}, {SRD_WS}, {S_T0} offen sc0 sc1")
        A(f"buffer_store_dwordx4 v[{G_+4}:{G_+7}], v{TM}, {SRD_WS}, {S_T0} offen offset:1024 sc0 sc1")

    if XS:
        for x in loadsA: A(x)
        A(f"s_mov_b32 {S_PH}, 1")
        for s_ in range(NS): compute(s_, KB_, False, wk=W + 8*XS + 8, wv=W + 8*XS + 8)
        for x_ in range(XS): compute(NS + x_, KB_, False, refill=False, wk=8*NS + 8*(XS-1-x_) + 12, wv=8*NS + 8*(XS-1-x_) + 8)
    A("L_loop:")
    A(f"s_cmp_lt_u32 {S_PH}, 2\ns_cbranch_scc1 L_qa")
    A(f"s_cmp_ge_u32 {S_LASTG}, {S_AEND}\ns_cbranch_scc1 L_afl")
    A("L_loop_c:")
    for s in range(NS):
        A(f"s_cmp_ge_u32 {S_IDX[s]}, 0x{INVALID:x}\ns_cbranch_scc1 L_done")
        compute_typed(s)
    A("s_branch L_loop")
    A("L_afl:")
    A(f"s_or_b32 {S_T0}, {S_IDX[0]}, {S_IDX[1]}")
    for q in range(2, NS): A(f"s_or_b32 {S_T0}, {S_T0}, {S_IDX[q]}")
    A(f"s_bitcmp1_b32 {S_T0}, 12\ns_cbranch_scc1 L_loop_c")
    A(f"s_mov_b32 {S_AEND}, -1")
    flush(DA, MLA, 4, True)
    A("s_branch L_loop_c")
    A("L_qa:")
    A(f"s_cmp_lg_u32 {S_PH}, 0\ns_cbranch_scc1 L_qa2")
    A(f"s_mov_b32 {S_PH}, 1")
    for x in loadsA: A(x)
    A("s_branch L_loop_c")
    A("L_qa2:")
    A(f"s_mov_b32 {S_PH}, 2")
    poll(loadsA, tagsA, "qa", sleep=2, pre_issued_wait=8*NS)
    for h in range(2):
        r = T0 + 8*h
        A(f"v_add_f32 v{r}, v{r}, v{r+2}\nv_add_f32 v{r+4}, v{r+4}, v{r+6}\nv_add_f32 v{r}, v{r}, v{r+4}")
        A(f"v_cvt_pk_bf16_f32 v{r}, v{r}, v{r}")
    A(f"v_lshlrev_b32 v{TM+2}, 1, {V_TID}")
    A(f"ds_write_b16 v{TM+2}, v{T0} offset:{QL}\nds_write_b16 v{TM+2}, v{T0+8} offset:{QL+512}")
    A("s_waitcnt lgkmcnt(0)")
    A(f"s_mov_b64 exec, 1\nds_add_u32 {V_CNTADDR}, {V_ONE} offset:16\ns_mov_b64 exec, -1")
    if not tst: stamp(3)
    A("s_branch L_loop_c")
    i = 0
    while i < len(ool):
        ool[i](); i += 1
    A("L_done:")
    stamp(4)
    flush(DB, MLB, 8, False)
    A(f"s_cmp_eq_u32 {S_AEND}, -1\ns_cbranch_scc1 L_done2")
    flush(DA, MLA, 4, True)
    A("L_done2:")
    stamp(5)
    A(f"s_cmp_lt_u32 {S_OWN}, 128\ns_cbranch_scc1 L_tailA")
    owner_addr(False)
    lb_, tb_ = owner_loads(False)
    poll(lb_, tb_, "brec", sleep=1)
    if tst: stamp(2)
    owner_consume(False, "L_end")
    if stamps: stamp_now(6)
    final_stage()
    if stamps: stamp_now(7)
    A("s_branch L_end")
    A("L_tailA:")
    owner_addr(True)
    la, ta = owner_loads(True)
    poll(la, ta, "arec", sleep=1)
    owner_consume(True, "L_end")
    if stamps: stamp_now(6)
    final_stage()
    if stamps: stamp_now(7)
    A(f"s_cmp_lg_u32 {S_OWN}, 0\ns_cbranch_scc1 L_end")
    A(f"s_mov_b64 exec, 1\nv_mov_b32 v{T0+10}, {S_TAG}")
    A(f"buffer_store_dword v{T0+10}, off, {SRD_WS}, 0 sc0 sc1")
    A("L_end:")
    A("s_endpgm")
    return g.L, NARCH + 32*(NS+XS)

HEADER = open("cdna_kernels/" + NAME + ".s.ref").read().split("; Override launch geometry")[0]

def emit(opt, path):
    body, nvgpr = build(opt)
    out = HEADER
    out += "; Override launch geometry by editing the next line (default: block=256,\n"
    out += f"; @launch grid=(256,1,1) block=({NW*64},1,1) lds={LDS_BYTES}\n"
    out += '.amdgcn_target "amdgcn-amd-amdhsa--gfx950"\n.text\n'
    out += f".globl {KN}\n.p2align 8\n.type {KN},@function\n{KN}:\n"
    out += "\n".join(body) + "\n"
    out += f""".section .rodata,"a"
.p2align 6
.amdhsa_kernel {KN}
  .amdhsa_next_free_vgpr {nvgpr}
  .amdhsa_next_free_sgpr 102
  .amdhsa_accum_offset {NARCH}
  .amdhsa_group_segment_fixed_size 0
  .amdhsa_kernarg_size 104
  .amdhsa_user_sgpr_count 2
  .amdhsa_user_sgpr_kernarg_segment_ptr 1
  .amdhsa_system_sgpr_workgroup_id_x 1
.end_amdhsa_kernel
"""
    open(path, "w").write(out)

if __name__ == "__main__":
    opt = {}
    path = "cdna_kernels/" + NAME + ".s"
    for a in sys.argv[1:]:
        if a.startswith("-o"): path = a[2:]
        elif "=" in a:
            k, v = a.split("="); opt[k] = int(v)
    emit(opt, path)
```

```python
import sys, struct, os

NAME = "concat_heads__sliding_block_cached__mha_block_cached__decode"
KN = NAME + "_kernel"
def f2u(f): return struct.unpack("<I", struct.pack("<f", f))[0]

class Gen:
    def __init__(self):
        self.L = []; self.lab = 0
    def A(self, s):
        for line in s.split("\n"):
            line = line.strip()
            self.L.append(line if line.endswith(":") else "    " + line)
    def label(self, base):
        self.lab += 1
        return f"L_{base}_{self.lab}"

NW = 4
QP_OFF = 0x1000; RA_OFF = 0x100000; RB_OFF = 0x300000; YP_OFF = 0x400000; ST_OFF = 0x800000
REC = 1088
MLA = 0; MLB = 256; CNT = 512; QL = 896
DQ = 2304; DY = 2304; DA = DQ + NW*2048; DB = DA + NW*2048
LDS_BYTES = 28672
CSCALE = 1.4426950408889634
SSCALE = 128 ** -0.5
TAGINC = 0x9E3779B9
NEG = -1.0e30
FLAGS = {0: "", 1: " nt", 2: " sc1 nt", 3: " sc0 sc1 nt", 4: " sc0 nt", 5: " sc1", 6: " sc0 sc1", 7: " sc0"}
ATYPE = 0x1000; INVALID = 0x8000; NT = 272

S_WG = "s2"; S_WAVE = "s3"
S_IDX = ["s48", "s49", "s4", "s57", "s59", "s60"]
S_A0 = "s5"; S_RET = "s6"; S_ABASE = "s7"; S_OWN = "s62"; S_PH = "s61"; S_QA = "s63"
SRD_KA = "s[8:11]"; SRD_VA = "s[12:15]"; SRD_KB = "s[16:19]"; SRD_VB = "s[20:23]"
SRD_WS = "s[24:27]"; SRD_WQ = "s[28:31]"; SRD_X = "s[32:35]"; SRD_WO = "s[36:39]"; SRD_OUT = "s[40:43]"
S_TAG = "s44"; S_C = "s45"; S_SC = "s101"; S_HI = "s89x"; S_BBASE = "s46"; S_OFF = "s47"
S_T0 = "s50"; S_T1 = "s51"; S_T2 = "s52"; S_T3 = "s53"; S_T4 = "s54"; S_T5 = "s55"
S_CNT = "s56"; S_REC = "s58"; S_AEND = "s90"; S_LASTG = "s91"
V_TID = "v0"; V_LANE = "v1"; V_N = "v2"; V_G = "v3"; V_KOFF = "v4"; V_VOFF = "v5"
V_SEL = [6, 7, 8, 9]
V_CNTADDR = "v13"; V_ONE = "v14"; V_GRAB = "v15"
S0 = 16; P0 = 44; TT = 48; X0 = 50; TM = 58
V_DEP = "v62"; V_TMP = "v63"
T0 = 64
KB_ = dict(Q=28, O=20, M="v10", MC="v11", L="v12")
KA_ = dict(Q=208, O=224, M="v232", MC="v233", L="v234")
V_QAOFF = "v235"
NARCH = 240

def build(opt):
    g = Gen(); A = g.A
    stamps = opt.get("stamps", 0); tst = opt.get("tst", 0)
    NS = opt.get("ns", 3)
    W = 8*(NS-1) + 4
    XS = opt.get("xs", 0)
    A0BASE = opt.get("a0", 32); A0STEP = opt.get("a0s", 0)
    assert A0BASE >= (2*NS+XS)*NW and A0BASE + 15*A0STEP + 16 <= NT
    slotK = lambda s: 32*s
    slotV = lambda s: 32*s + 16
    def stamp(k, wave=0):
        if not stamps: return
        lb = g.label("st")
        A(f"s_cmp_lg_u32 {S_WAVE}, {wave}\ns_cbranch_scc1 {lb}")
        stamp_now(k)
        A(f"{lb}:")
    def stamp_now(k):
        A("s_memrealtime s[98:99]\ns_waitcnt lgkmcnt(0)")
        A(f"v_mov_b32 v238, s98\nv_mov_b32 v239, s99\ns_lshl_b32 s100, {S_WG}, 6\ns_add_u32 s100, s100, {ST_OFF + k*8}")
        A(f"s_mov_b64 s[98:99], exec\ns_mov_b64 exec, 1\nbuffer_store_dwordx2 v[238:239], off, {SRD_WS}, s100\ns_mov_b64 exec, s[98:99]")
    def srd(sr, lo, hi, size):
        b = int(sr[2:sr.index(":")])
        A(f"s_mov_b32 s{b}, {lo}\ns_mov_b32 s{b+1}, {hi}\ns_mov_b32 s{b+2}, 0x{size:x}\ns_mov_b32 s{b+3}, 0x20000")
    def issueK(slot, srdk, soff):
        for j in range(4):
            r = slotK(slot) + 4*j
            A(f"buffer_load_dwordx4 a[{r}:{r+3}], {V_KOFF}, {srdk}, {soff} offen offset:{j*64}{FLAGS[opt.get('kv', 1)]}")
    def issueV(slot, srdv, soff):
        for j in range(4):
            r = slotV(slot) + 4*j
            A(f"buffer_load_dwordx4 a[{r}:{r+3}], {V_VOFF}, {srdv}, {soff} offen offset:{j*256}{FLAGS[opt.get('kv', 1)]}")

    A(f"s_cmp_ge_u32 {S_WG}, 256\ns_cbranch_scc1 L_end")
    if stamps: A("s_memrealtime s[96:97]")
    A("s_load_dwordx16 s[64:79], s[0:1], 0")
    A("s_load_dwordx8 s[80:87], s[0:1], 64")
    A("s_load_dwordx2 s[88:89], s[0:1], 96")
    A(f"v_lshrrev_b32 {V_LANE}, 6, {V_TID}")
    A("s_nop 0")
    A(f"v_readfirstlane_b32 {S_WAVE}, {V_LANE}")
    A(f"v_and_b32 {V_LANE}, 63, {V_TID}")
    A(f"v_and_b32 {V_N}, 15, {V_LANE}")
    A(f"v_lshrrev_b32 {V_G}, 4, {V_LANE}")
    A(f"v_bfe_u32 v{TM}, {V_N}, 2, 1\nv_lshlrev_b32 v{TM}, 10, v{TM}\nv_lshl_add_u32 v{TM}, {V_G}, 3, v{TM}")
    A(f"v_lshlrev_b32 v{TM+1}, 15, {V_G}\nv_lshl_add_u32 v{TM+1}, {V_N}, 4, v{TM+1}")
    A(f"v_lshlrev_b32 {V_KOFF}, 8, {V_N}\nv_lshl_add_u32 {V_KOFF}, {V_G}, 4, {V_KOFF}")
    A(f"v_lshlrev_b32 {V_VOFF}, 10, {V_G}\nv_lshl_add_u32 {V_VOFF}, {V_N}, 4, {V_VOFF}")
    A(f"s_and_b32 {S_T0}, {S_WG}, 3")
    A(f"s_lshl_b32 {S_T1}, {S_T0}, 8\ns_lshl_b32 {S_T2}, {S_WAVE}, 6\ns_add_u32 {S_T3}, {S_T1}, {S_T2}")
    A(f"s_lshl_b32 {S_T1}, {S_T0}, 20\ns_lshl_b32 {S_T2}, {S_WAVE}, 18\ns_add_u32 {S_T1}, {S_T1}, {S_T2}")
    A(f"s_bfe_u32 {S_T2}, {S_WG}, 0x50002\ns_lshl_b32 {S_T2}, {S_T2}, 8\ns_add_u32 {S_T1}, {S_T1}, {S_T2}")
    A(f"s_and_b32 {S_OWN}, {S_WG}, 1\ns_lshl_b32 {S_OWN}, {S_OWN}, 7\ns_lshr_b32 {S_T2}, {S_WG}, 1\ns_or_b32 {S_OWN}, {S_OWN}, {S_T2}")
    A(f"s_lshl_b32 {S_BBASE}, {S_WG}, 20\ns_lshl_b32 {S_T2}, {S_WAVE}, 12\ns_add_u32 {S_OFF}, {S_BBASE}, {S_T2}")
    A("s_waitcnt lgkmcnt(0)")
    A(f"s_cmp_lt_u32 {S_WG}, 128")
    A("s_cselect_b32 s28, s70, s80\ns_cselect_b32 s29, s71, s81\ns_mov_b32 s30, 0x400000\ns_mov_b32 s31, 0x20000")
    A("s_cselect_b32 s32, s64, s74\ns_cselect_b32 s33, s65, s75\ns_mov_b32 s34, 0x800\ns_mov_b32 s35, 0x20000")
    for t in range(2):
        for rho in range(4):
            r = T0 + 16*t + 4*rho
            A(f"buffer_load_dwordx4 v[{r}:{r+3}], v{TM+1}, {SRD_WQ}, {S_T1} offen nt")
            if rho < 3: A(f"s_add_u32 {S_T1}, {S_T1}, 8192")
            elif t == 0: A(f"s_add_u32 {S_T1}, {S_T1}, {13*8192}")
    XR = T0 + 32
    A(f"buffer_load_dwordx2 v[{XR}:{XR+1}], v{TM}, {SRD_X}, {S_T3} offen")
    A(f"buffer_load_dwordx2 v[{XR+2}:{XR+3}], v{TM}, {SRD_X}, {S_T3} offen offset:32")
    srd(SRD_WS, "s88", "s89", 0x1000000)
    A(f"buffer_load_dword v{T0+40}, off, {SRD_WS}, 0 sc0 sc1")
    srd(SRD_KB, "s76", "s77", 0x10000000)
    srd(SRD_VB, "s78", "s79", 0x10000000)
    A("s_barrier")
    issueK(0, SRD_KB, S_OFF); issueV(0, SRD_VB, S_OFF)
    A(f"s_mov_b32 {S_IDX[0]}, 0")
    srd(SRD_KA, "s66", "s67", 0x4000000)
    srd(SRD_VA, "s68", "s69", 0x4000000)
    srd(SRD_OUT, "s84", "s85", 0x1000)
    A(f"s_cmp_lt_u32 {S_OWN}, 128")
    A("s_cselect_b32 s36, s72, s82\ns_cselect_b32 s37, s73, s83\ns_mov_b32 s38, 0x400000\ns_mov_b32 s39, 0x20000")
    A(f"v_and_b32 {V_TMP}, 3, {V_N}")
    for idx, (n_lo, lo, hi) in enumerate([(0, 0x0c0c0100, 0x01000c0c), (2, 0x0c0c0100, 0x01000c0c), (0, 0x0c0c0302, 0x03020c0c), (2, 0x0c0c0302, 0x03020c0c)]):
        v = f"v{V_SEL[idx]}"
        A(f"v_mov_b32 {v}, 0x0c0c0c0c")
        A(f"v_mov_b32 v{TM}, 0x{lo:08x}\nv_mov_b32 v{TM+1}, 0x{hi:08x}")
        A(f"v_cmp_eq_u32 vcc, {n_lo}, {V_TMP}\ns_nop 1\nv_cndmask_b32 {v}, {v}, v{TM}, vcc")
        A(f"v_cmp_eq_u32 vcc, {n_lo+1}, {V_TMP}\ns_nop 1\nv_cndmask_b32 {v}, {v}, v{TM+1}, vcc")
    A(f"v_lshrrev_b32 {V_DEP}, 2, {V_N}\nv_lshlrev_b32 {V_DEP}, 9, {V_DEP}")
    A(f"v_lshl_add_u32 {V_DEP}, {V_G}, 7, {V_DEP}\nv_lshl_add_u32 {V_DEP}, {V_TMP}, 2, {V_DEP}")
    A(f"s_lshl_b32 {S_T0}, {S_WAVE}, 11\nv_add_u32 {V_DEP}, {S_T0}, {V_DEP}")
    A(f"v_mov_b32 {V_CNTADDR}, {CNT}\nv_mov_b32 {V_ONE}, 1")
    A(f"s_mov_b32 {S_C}, 0x{f2u(CSCALE):08x}\ns_mov_b32 {S_SC}, 0x{f2u(SSCALE):08x}")
    A(f"s_lshr_b32 {S_T1}, {S_WG}, 4\ns_lshl_b32 {S_T1}, {S_T1}, 22\ns_add_u32 {S_T1}, {S_T1}, 0x300000")
    A(f"s_and_b32 {S_T2}, {S_WG}, 15\ns_lshl_b32 {S_T3}, {S_T2}, 16\ns_add_u32 {S_ABASE}, {S_T1}, {S_T3}")
    A(f"s_mul_i32 {S_A0}, {S_T2}, {A0STEP}\ns_add_u32 {S_A0}, {S_A0}, {A0BASE}")
    A(f"s_mov_b32 {S_RET}, 0\ns_mov_b32 {S_PH}, 0\ns_mov_b32 {S_QA}, 0\ns_add_u32 {S_AEND}, {S_A0}, 16\ns_mov_b32 {S_LASTG}, 0")
    for kd in (KB_, KA_):
        A(f"v_mov_b32 {kd['M']}, 0x{f2u(NEG):08x}\nv_mov_b32 {kd['MC']}, 0x{f2u(NEG):08x}\nv_mov_b32 {kd['L']}, 0")
    for i in range(8): A(f"v_mov_b32 v{KA_['O']+i}, 0")
    lb = g.label("zc")
    A(f"s_cmp_lg_u32 {S_WAVE}, 0\ns_cbranch_scc1 {lb}")
    A(f"v_mov_b32 v{TM}, {(NS+XS)*NW}\nv_mov_b32 v{TM+1}, 0\nv_mov_b32 v{TM+2}, 0\nv_mov_b32 v{TM+3}, 0")
    A(f"s_mov_b64 exec, 1\nds_write_b128 {V_CNTADDR}, v[{TM}:{TM+3}]\nds_write_b32 {V_CNTADDR}, v{TM+1} offset:16\ns_mov_b64 exec, -1")
    A(f"{lb}:")
    if stamps:
        lb = g.label("st")
        A(f"s_cmp_lg_u32 {S_WAVE}, 0\ns_cbranch_scc1 {lb}")
        A(f"v_mov_b32 v238, s96\nv_mov_b32 v239, s97\ns_lshl_b32 s100, {S_WG}, 6\ns_add_u32 s100, s100, {ST_OFF}")
        A(f"s_mov_b64 exec, 1\nbuffer_store_dwordx2 v[238:239], off, {SRD_WS}, s100\ns_mov_b64 exec, -1")
        A(f"{lb}:")
    OB_ = KB_['O']
    for i in range(8): A(f"v_mov_b32 v{OB_+i}, 0")
    A("s_waitcnt vmcnt(8)")
    A(f"v_readfirstlane_b32 {S_TAG}, v{T0+40}")
    def diag(tt=TT):
        for rho in range(4):
            src = tt + (rho >> 1); hi = rho & 1
            A(f"v_perm_b32 v{X0+2*rho}, v{src}, v{src}, v{V_SEL[0+2*hi]}")
            A(f"v_perm_b32 v{X0+2*rho+1}, v{src}, v{src}, v{V_SEL[1+2*hi]}")
    def dmfma(acc, areg):
        for rho in range(4):
            for u in range(2):
                A(f"v_mfma_f32_16x16x16_bf16 v[{acc+4*u}:{acc+4*u+3}], {areg(rho,u)}, v[{X0+2*rho}:{X0+2*rho+1}], v[{acc+4*u}:{acc+4*u+3}]")
    vop = lambda base: (lambda rho, u: f"v[{base+4*rho+2*u}:{base+4*rho+2*u+1}]")
    aop = lambda base: (lambda rho, u: f"a[{base+4*rho+2*u}:{base+4*rho+2*u+1}]")
    diag(XR)
    A(f"s_add_u32 {S_TAG}, {S_TAG}, 0x{TAGINC:08x}")
    A("s_nop 0")
    dmfma(OB_, vop(T0))
    A("s_nop 1")
    diag(XR+2)
    A("s_nop 1")
    dmfma(OB_, vop(T0+16))
    A("s_nop 7\ns_nop 1")
    def deposit(area, acc):
        for u in range(2):
            for rp in range(4):
                A(f"ds_write_b32 {V_DEP}, v{acc+4*u+rp} offset:{area + rp*32 + u*16}")
    deposit(DQ, OB_)
    A("s_waitcnt lgkmcnt(0)\ns_barrier")
    A(f"v_lshlrev_b32 v{TM}, 2, {V_TID}")
    for k in range(NW): A(f"ds_read_b32 v{T0+k}, v{TM} offset:{DQ + k*2048}")
    A("s_waitcnt lgkmcnt(0)")
    A(f"v_add_f32 v{T0}, v{T0}, v{T0+1}\nv_add_f32 v{T0+2}, v{T0+2}, v{T0+3}\nv_add_f32 v{T0}, v{T0}, v{T0+2}")
    A(f"v_mov_b32 v{T0+1}, {S_TAG}")
    A(f"v_lshlrev_b32 v{TM}, 3, {V_TID}")
    A(f"s_lshl_b32 {S_T1}, {S_WG}, 11\ns_add_u32 {S_T1}, {S_T1}, {QP_OFF}")
    A(f"buffer_store_dwordx2 v[{T0}:{T0+1}], v{TM}, {SRD_WS}, {S_T1} offen sc0 sc1")
    if not tst: stamp(1)
    for i in range(8): A(f"v_mov_b32 v{OB_+i}, 0")
    def check_tags(tagregs):
        acc = V_TMP
        A(f"v_xor_b32 {acc}, {S_TAG}, v{tagregs[0]}")
        for t in tagregs[1:]:
            A(f"v_xor_b32 v{t}, {S_TAG}, v{t}\nv_or_b32 {acc}, {acc}, v{t}")
        A(f"v_cmp_ne_u32 vcc, 0, {acc}")
    def poll(loads, tagregs, name, sleep=1, pre_issued_wait=None):
        l_top = g.label(name); l_ok = g.label(name + "ok"); l_chk = g.label(name + "chk")
        A(f"s_mov_b32 {S_CNT}, 0")
        if pre_issued_wait is not None:
            A(f"s_waitcnt vmcnt({pre_issued_wait})\ns_branch {l_chk}")
        A(f"{l_top}:")
        for s in loads: A(s)
        A("s_waitcnt vmcnt(0)")
        A(f"{l_chk}:")
        check_tags(tagregs)
        A(f"s_cbranch_vccz {l_ok}")
        A(f"s_add_u32 {S_CNT}, {S_CNT}, 1\ns_cmp_lt_u32 {S_CNT}, 0x40000\ns_cbranch_scc0 {l_ok}")
        A(f"s_sleep {sleep}\ns_branch {l_top}")
        A(f"{l_ok}:")
    A(f"v_and_b32 v{TM+1}, 127, {V_TID}\nv_lshlrev_b32 v{TM+1}, 3, v{TM+1}")
    A(f"s_bfe_u32 {S_T3}, {S_WG}, 0x50002\ns_lshl_b32 {S_T3}, {S_T3}, 13")
    A(f"s_lshr_b32 {S_T4}, {S_WG}, 7\ns_lshl_b32 {S_T4}, {S_T4}, 10\ns_add_u32 {S_T3}, {S_T3}, {S_T4}")
    A(f"s_add_u32 {S_T3}, {S_T3}, {QP_OFF + 128*2048}\ns_add_u32 {S_T4}, {S_T3}, 4096")
    loadsB = [f"buffer_load_dwordx2 v[{T0+16+2*dq}:{T0+16+2*dq+1}], v{TM+1}, {SRD_WS}, {S_T3 if dq<2 else S_T4} offen offset:{(dq&1)*2048} sc0 sc1" for dq in range(4)]
    tagsB = [T0+17, T0+19, T0+21, T0+23]
    A(f"v_lshrrev_b32 {V_QAOFF}, 7, {V_TID}\nv_lshlrev_b32 {V_QAOFF}, 13, {V_QAOFF}\nv_add_u32 {V_QAOFF}, {V_QAOFF}, v{TM+1}")
    A(f"s_bfe_u32 {S_T1}, {S_WG}, 0x30004\ns_lshl_b32 {S_T1}, {S_T1}, 15")
    A(f"s_lshr_b32 {S_T2}, {S_WG}, 7\ns_lshl_b32 {S_T2}, {S_T2}, 10\ns_add_u32 {S_T1}, {S_T1}, {S_T2}")
    A(f"s_add_u32 s92, {S_T1}, {QP_OFF}\ns_add_u32 s93, s92, 4096\ns_add_u32 s94, s92, 16384\ns_add_u32 s95, s92, 20480")
    loadsA = []; tagsA = []
    for h in range(2):
        for dq in range(4):
            r = T0 + 8*h + 2*dq
            loadsA.append(f"buffer_load_dwordx2 v[{r}:{r+1}], {V_QAOFF}, {SRD_WS}, s{92 + 2*h + (dq >> 1)} offen offset:{(dq&1)*2048} sc0 sc1")
            tagsA.append(r+1)
    def issue_first(s):
        A(f"s_add_u32 {S_OFF}, {S_OFF}, {NW*4096}\ns_mov_b32 {S_IDX[s]}, 0")
        issueK(s, SRD_KB, S_OFF); issueV(s, SRD_VB, S_OFF)
    A(f"s_cmp_ge_u32 {S_WAVE}, 2\ns_cselect_b32 {S_RET}, 1, 0")
    issue_first(1)
    for s in range(2, NS+XS):
        l1 = g.label("qi"); l2 = g.label("qj")
        A(f"s_cmp_lg_u32 {S_RET}, 0\ns_cbranch_scc1 {l1}")
        for x in loadsB: A(x)
        A(f"{l1}:")
        issue_first(s)
        A(f"s_cmp_lg_u32 {S_RET}, 0\ns_cbranch_scc1 {l2}")
        A("s_waitcnt vmcnt(8)")
        check_tags(tagsB)
        A(f"s_cbranch_vccnz {l2}")
        A(f"s_mov_b32 {S_RET}, 2")
        A(f"{l2}:")
    lo = g.label("qfo"); lbq2 = g.label("qw2")
    A(f"s_cmp_eq_u32 {S_RET}, 1\ns_cbranch_scc1 {lbq2}")
    A(f"s_cmp_eq_u32 {S_RET}, 2\ns_cbranch_scc1 {lo}")
    poll(loadsB, tagsB, "qb", sleep=2)
    A(f"{lo}:")
    r = T0 + 16
    A(f"v_add_f32 v{r}, v{r}, v{r+2}\nv_add_f32 v{r+4}, v{r+4}, v{r+6}\nv_add_f32 v{r}, v{r}, v{r+4}")
    A(f"v_cvt_pk_bf16_f32 v{r}, v{r}, v{r}")
    A(f"v_lshlrev_b32 v{TM+2}, 1, {V_TID}")
    A(f"ds_write_b16 v{TM+2}, v{r} offset:{QL + 1024}")
    A(f"{lbq2}:")
    A(f"s_mov_b32 {S_RET}, 0")
    A("s_waitcnt lgkmcnt(0)\ns_barrier")
    if not tst: stamp(2)
    A(f"v_lshlrev_b32 v{TM}, 4, {V_G}")
    for j in range(4): A(f"ds_read_b128 v[{KB_['Q']+4*j}:{KB_['Q']+4*j+3}], v{TM} offset:{QL + 1024 + j*64}")
    A("s_waitcnt lgkmcnt(0)")

    WO = T0
    def wo_tile(t):
        A(f"v_lshlrev_b32 v{TM+3}, 12, {V_G}\nv_lshl_add_u32 v{TM+3}, {V_N}, 4, v{TM+3}")
        A(f"s_bfe_u32 {S_T0}, {S_OWN}, 0x50002\ns_lshl_b32 {S_T0}, {S_T0}, 17\ns_lshl_b32 {S_T1}, {S_WAVE}, 15\ns_add_u32 {S_T0}, {S_T0}, {S_T1}")
        A(f"s_and_b32 {S_T1}, {S_OWN}, 3\ns_lshl_b32 {S_T1}, {S_T1}, 8\ns_add_u32 {S_T0}, {S_T0}, {S_T1}\ns_add_u32 {S_T0}, {S_T0}, {16384*t}")
        for rho in range(4):
            r = WO + 16*t + 4*rho
            A(f"buffer_load_dwordx4 v[{r}:{r+3}], v{TM+3}, {SRD_WO}, {S_T0} offen offset:{rho*1024} nt")
    ool = []
    def compute(slot, kd, isA, refill=True, wk=None, wv=None):
        sidx = S_IDX[slot]
        K = slotK(slot); V = slotV(slot)
        Q = kd['Q']; O = kd['O']; VM = kd['M']; VMC = kd['MC']; VL = kd['L']
        if wk is None: wk = W
        if wv is None: wv = W
        if refill: A(f"s_mov_b64 exec, 1\nds_add_rtn_u32 {V_GRAB}, {V_CNTADDR}, {V_ONE}\ns_mov_b64 exec, -1")
        A(f"s_waitcnt vmcnt({wk})")
        for j in range(4):
            c = "0" if j == 0 else f"v[{S0}:{S0+3}]"
            A(f"v_mfma_f32_16x16x32_bf16 v[{S0}:{S0+3}], a[{K+4*j}:{K+4*j+3}], v[{Q+4*j}:{Q+4*j+3}], {c}")
        lra = g.label("refA"); lri = g.label("refI"); lk = g.label("afterK"); lkn = g.label("normK"); lvx = g.label("vx"); lvr = g.label("afterV")
        if refill:
            A("s_waitcnt lgkmcnt(0)")
            A(f"v_readfirstlane_b32 {sidx}, {V_GRAB}")
            A("s_nop 3")
            A(f"s_mov_b32 {S_LASTG}, {sidx}")
            A(f"s_sub_u32 {S_T0}, {sidx}, {S_A0}\ns_cmp_lt_u32 {S_T0}, 16\ns_cbranch_scc1 {lra}")
            A(f"s_cmp_ge_u32 {sidx}, {NT}\ns_cbranch_scc1 {lri}")
            A(f"s_cmp_ge_u32 {sidx}, {S_A0}\ns_cselect_b32 {S_T0}, 16, 0\ns_sub_u32 {S_T0}, {sidx}, {S_T0}\ns_lshl_b32 {S_T0}, {S_T0}, 12\ns_add_u32 {S_OFF}, {S_BBASE}, {S_T0}")
            A(f"{lkn}:")
            issueK(slot, SRD_KB, S_OFF)
            A(f"{lk}:")
        else:
            A("s_nop 7\ns_nop 1")
        for rnd in range(2):
            A(f"v_cvt_pk_bf16_f32 v{TM}, v{S0}, v{S0+1}\nv_cvt_pk_bf16_f32 v{TM+1}, v{S0+2}, v{S0+3}")
            A(f"v_lshlrev_b32 v{S0}, 16, v{TM}\nv_and_b32 v{S0+1}, 0xffff0000, v{TM}\nv_lshlrev_b32 v{S0+2}, 16, v{TM+1}\nv_and_b32 v{S0+3}, 0xffff0000, v{TM+1}")
            if rnd == 0:
                for i in range(4): A(f"v_mul_f32 v{S0+i}, {S_SC}, v{S0+i}")
        A(f"v_max3_f32 v{TM}, v{S0}, v{S0+1}, v{S0+2}\nv_max_f32 v{TM}, v{TM}, v{S0+3}")
        A(f"v_cmp_gt_f32 vcc, v{TM}, {VM}")
        lf = g.label("fast")
        A(f"s_cbranch_vccz {lf}")
        A(f"v_mov_b32 v{TM+1}, v{TM}\ns_nop 1\nv_permlane32_swap_b32 v{TM+1}, v{TM}\ns_nop 1\nv_max_f32 v{TM}, v{TM}, v{TM+1}")
        A(f"v_mov_b32 v{TM+1}, v{TM}\ns_nop 1\nv_permlane16_swap_b32 v{TM+1}, v{TM}\ns_nop 1\nv_max_f32 v{TM}, v{TM}, v{TM+1}")
        A(f"v_max_f32 {VM}, {VM}, v{TM}")
        A(f"v_mul_f32 v{TM+1}, {S_C}, {VM}")
        A(f"v_sub_f32 v{TM+2}, {VMC}, v{TM+1}")
        A(f"v_exp_f32 v{TM+2}, v{TM+2}")
        A(f"v_mov_b32 {VMC}, v{TM+1}")
        A(f"v_mul_f32 {VL}, {VL}, v{TM+2}")
        for i in range(8): A(f"v_mul_f32 v{O+i}, v{O+i}, v{TM+2}")
        A(f"{lf}:")
        for i in range(4): A(f"v_fma_f32 v{P0+i}, v{S0+i}, {S_C}, -{VMC}")
        for i in range(4): A(f"v_exp_f32 v{P0+i}, v{P0+i}")
        A("s_nop 0")
        A(f"v_cvt_pk_bf16_f32 v{TT}, v{P0}, v{P0+1}\nv_cvt_pk_bf16_f32 v{TT+1}, v{P0+2}, v{P0+3}")
        A(f"v_add_f32 v{P0}, v{P0}, v{P0+1}\nv_add_f32 v{P0+2}, v{P0+2}, v{P0+3}")
        diag()
        A(f"v_add_f32 {VL}, {VL}, v{P0}\nv_add_f32 {VL}, {VL}, v{P0+2}")
        A(f"s_waitcnt vmcnt({wv})")
        dmfma(O, aop(V))
        if not refill: return
        A(f"s_cmp_ge_u32 {sidx}, 0x{ATYPE:x}\ns_cbranch_scc1 {lvx}")
        A(f"{lvr}_n:")
        issueV(slot, SRD_VB, S_OFF)
        if opt.get("tp", 0):
            P_, D_ = {1: (16, 131072), 2: (1, 32768), 3: (4, 65536), 4: (16, 262144)}[opt["tp"]]
            lt_ = g.label("tp")
            if P_ > 1: A(f"s_and_b32 {S_T0}, {sidx}, {P_-1}\ns_cmp_lg_u32 {S_T0}, 0\ns_cbranch_scc1 {lt_}")
            A(f"s_add_u32 {S_T0}, {S_OFF}, {D_}")
            A(f"s_mov_b64 exec, 1\nbuffer_load_dword v236, off, {SRD_KB}, {S_T0} nt\nbuffer_load_dword v237, off, {SRD_VB}, {S_T0} nt\ns_mov_b64 exec, -1")
            A(f"{lt_}:")
        A(f"{lvr}:")
        def emit():
            A(f"{lra}:")
            A(f"s_lshl_b32 {S_T0}, {S_T0}, 12\ns_add_u32 {S_OFF}, {S_ABASE}, {S_T0}\ns_mov_b32 {sidx}, 0x{ATYPE:x}")
            issueK(slot, SRD_KA, S_OFF)
            A(f"s_branch {lk}")
            A(f"{lri}:")
            A(f"s_mov_b32 {sidx}, 0x{INVALID:x}\ns_mov_b32 {S_OFF}, 0x7ff00000")
            A(f"s_cmp_lg_u32 {S_RET}, 0\ns_cbranch_scc1 {lkn}")
            A(f"s_mov_b32 {S_RET}, 1")
            wo_tile(0)
            A(f"s_branch {lk}")
            A(f"{lvx}:")
            A(f"s_cmp_ge_u32 {sidx}, 0x{INVALID:x}\ns_cbranch_scc1 {lvx}_i")
            issueV(slot, SRD_VA, S_OFF)
            A(f"s_branch {lvr}")
            A(f"{lvx}_i:")
            A(f"s_cmp_lg_u32 {S_RET}, 1\ns_cbranch_scc1 {lvr}_n")
            A(f"s_mov_b32 {S_RET}, 2")
            wo_tile(1)
            A(f"s_branch {lvr}")
        ool.append(emit)

    def compute_typed(slot):
        la = g.label("cA"); lr = g.label("cR")
        A(f"s_bitcmp1_b32 {S_IDX[slot]}, 12\ns_cbranch_scc1 {la}")
        compute(slot, KB_, False)
        A(f"{lr}:")
        def emit():
            lq = g.label("qa"); lsp = g.label("qsp")
            A(f"{la}:")
            A(f"s_cmp_lg_u32 {S_QA}, 0\ns_cbranch_scc1 {lq}")
            A(f"s_mov_b32 {S_CNT}, 0")
            A(f"{lsp}:")
            A(f"ds_read_b32 v{TM}, {V_CNTADDR} offset:16\ns_waitcnt lgkmcnt(0)\nv_readfirstlane_b32 {S_T0}, v{TM}\ns_add_u32 {S_CNT}, {S_CNT}, 1")
            A(f"s_cmp_ge_u32 {S_CNT}, 0x400000\ns_cbranch_scc1 {lsp}_x")
            A(f"s_cmp_lt_u32 {S_T0}, {NW}\ns_cbranch_scc1 {lsp}")
            A(f"{lsp}_x:")
            A(f"v_lshrrev_b32 v{TM}, 2, {V_N}\nv_lshlrev_b32 v{TM}, 8, v{TM}\nv_lshl_add_u32 v{TM}, {V_G}, 4, v{TM}")
            for j in range(4): A(f"ds_read_b128 v[{KA_['Q']+4*j}:{KA_['Q']+4*j+3}], v{TM} offset:{QL + j*64}")
            A(f"s_waitcnt lgkmcnt(0)\ns_mov_b32 {S_QA}, 1")
            A(f"{lq}:")
            compute(slot, KA_, True)
            A(f"s_branch {lr}")
        ool.append(emit)

    def flush(area, mlarea, cntoff, isA):
        kd = KA_ if isA else KB_
        VL = kd['L']; VMC = kd['MC']
        A(f"v_mov_b32 v{TM+1}, {VL}\ns_nop 1\nv_permlane32_swap_b32 v{TM+1}, {VL}\ns_nop 1\nv_add_f32 {VL}, {VL}, v{TM+1}")
        A(f"v_mov_b32 v{TM+1}, {VL}\ns_nop 1\nv_permlane16_swap_b32 v{TM+1}, {VL}\ns_nop 1\nv_add_f32 {VL}, {VL}, v{TM+1}")
        A("s_nop 7")
        deposit(area, kd['O'])
        A(f"v_lshrrev_b32 v{TM}, 2, {V_N}\nv_lshlrev_b32 v{TM}, 3, v{TM}\ns_lshl_b32 {S_T0}, {S_WAVE}, 5\nv_add_u32 v{TM}, {S_T0}, v{TM}")
        A(f"v_mov_b32 v{TM+2}, {VMC}\nv_mov_b32 v{TM+3}, {VL}")
        A(f"ds_write_b64 v{TM}, v[{TM+2}:{TM+3}] offset:{mlarea}")
        A("s_waitcnt lgkmcnt(0)")
        A(f"s_mov_b64 exec, 1\nds_add_rtn_u32 v{TM}, {V_CNTADDR}, {V_ONE} offset:{cntoff}\ns_mov_b64 exec, -1")
        A("s_waitcnt lgkmcnt(0)")
        A(f"v_readfirstlane_b32 {S_T0}, v{TM}")
        lb = g.label("nomerge")
        A("s_nop 3")
        A(f"s_cmp_lg_u32 {S_T0}, {NW-1}\ns_cbranch_scc1 {lb}")
        ns = 4 if isA else 1
        MB = T0 + 32
        A(f"v_and_b32 v{TM}, 3, {V_LANE}\nv_lshlrev_b32 v{TM}, 3, v{TM}")
        for k in range(NW): A(f"ds_read_b64 v[{MB+2*k}:{MB+2*k+1}], v{TM} offset:{mlarea + k*32}")
        A(f"v_lshlrev_b32 v{TM+1}, 3, {V_LANE}")
        OB = T0 + 44
        for sl in range(ns):
            for k in range(NW):
                r = OB + 8*sl + 2*k
                A(f"ds_read_b64 v[{r}:{r+1}], v{TM+1} offset:{area + k*2048 + sl*512}")
        A(f"s_waitcnt lgkmcnt({min(15, NW*ns)})")
        M = T0 + 40; Ls = T0 + 42
        if NW*ns > 15: A("s_waitcnt lgkmcnt(12)")
        A(f"v_max3_f32 v{M}, v{MB}, v{MB+2}, v{MB+4}\nv_max_f32 v{M}, v{M}, v{MB+6}")
        for k in range(NW): A(f"v_sub_f32 v{MB+2*k}, v{MB+2*k}, v{M}")
        for k in range(NW): A(f"v_exp_f32 v{MB+2*k}, v{MB+2*k}")
        A("s_nop 0")
        A(f"v_mul_f32 v{Ls}, v{MB}, v{MB+1}")
        for k in range(1, NW): A(f"v_fmac_f32 v{Ls}, v{MB+2*k}, v{MB+2*k+1}")
        A(f"v_mov_b32 v{M+1}, {S_TAG}\nv_mov_b32 v{Ls+1}, {S_TAG}")
        for sl in range(ns):
            for k in range(NW): A(f"v_readlane_b32 s{64+4*sl+k}, v{MB+2*k}, {sl}")
        A("s_waitcnt lgkmcnt(0)")
        GB = T0 + 76
        for sl in range(ns):
            r = OB + 8*sl
            A(f"v_mul_f32 v{GB+4*sl}, s{64+4*sl}, v{r}\nv_mul_f32 v{GB+4*sl+2}, s{64+4*sl}, v{r+1}")
            for k in range(1, NW):
                A(f"v_fmac_f32 v{GB+4*sl}, s{64+4*sl+k}, v{r+2*k}\nv_fmac_f32 v{GB+4*sl+2}, s{64+4*sl+k}, v{r+2*k+1}")
            A(f"v_mov_b32 v{GB+4*sl+1}, {S_TAG}\nv_mov_b32 v{GB+4*sl+3}, {S_TAG}")
        if isA:
            A(f"s_mul_i32 {S_T0}, {S_WG}, {4*REC}\ns_add_u32 {S_T0}, {S_T0}, {RA_OFF}")
        else:
            A(f"s_mul_i32 {S_T0}, {S_WG}, {REC}\ns_add_u32 {S_T0}, {S_T0}, {RB_OFF}")
        A(f"v_lshlrev_b32 v{TM+1}, 4, {V_LANE}")
        for sl in range(ns):
            A(f"buffer_store_dwordx4 v[{GB+4*sl}:{GB+4*sl+3}], v{TM+1}, {SRD_WS}, {S_T0} offen offset:{sl*1024} sc0 sc1")
        A(f"s_add_u32 {S_T0}, {S_T0}, {ns*1024}")
        A(f"s_mov_b64 exec, 15")
        A(f"buffer_store_dwordx4 v[{M}:{M+3}], v{TM+1}, {SRD_WS}, {S_T0} offen sc0 sc1")
        A("s_mov_b64 exec, -1")
        if stamps and tst and not isA: stamp_now(1)
        A(f"{lb}:")

    def final_stage():
        A(f"v_lshrrev_b32 v{TM}, 1, {V_LANE}\nv_lshlrev_b32 v{TM}, 11, v{TM}\nv_and_b32 v{TM+1}, 1, {V_LANE}\nv_lshl_add_u32 v{TM}, v{TM+1}, 10, v{TM}")
        A(f"s_lshr_b32 {S_T0}, {S_OWN}, 7\ns_lshl_b32 {S_T0}, {S_T0}, 2\ns_and_b32 {S_T1}, {S_OWN}, 3\ns_add_u32 {S_T0}, {S_T0}, {S_T1}\ns_lshl_b32 {S_T0}, {S_T0}, 16")
        A(f"s_bfe_u32 {S_T1}, {S_OWN}, 0x50002\ns_lshl_b32 {S_T1}, {S_T1}, 5\ns_add_u32 {S_T0}, {S_T0}, {S_T1}\ns_add_u32 {S_T0}, {S_T0}, {YP_OFF}")
        F = T0 + 32
        loads = [f"buffer_load_dwordx4 v[{F}:{F+3}], v{TM}, {SRD_WS}, {S_T0} offen sc0 sc1",
                 f"buffer_load_dwordx4 v[{F+4}:{F+7}], v{TM}, {SRD_WS}, {S_T0} offen offset:16 sc0 sc1"]
        poll(loads, [F+1, F+3, F+5, F+7], "yp", sleep=1)
        ys = [F, F+2, F+4, F+6]
        for rr in (2, 4, 8):
            for y in ys: A(f"v_add_f32_dpp v{y}, v{y}, v{y} row_ror:{rr} row_mask:0xf bank_mask:0xf")
        for sw in ("v_permlane16_swap_b32", "v_permlane32_swap_b32"):
            for y in ys: A(f"v_mov_b32 v{y+1}, v{y}")
            A("s_nop 1")
            for y in ys: A(f"{sw} v{y+1}, v{y}")
            A("s_nop 1")
            for y in ys: A(f"v_add_f32 v{y}, v{y}, v{y+1}")
        A(f"v_cvt_pk_bf16_f32 v{F+8}, v{F}, v{F+2}\nv_cvt_pk_bf16_f32 v{F+9}, v{F+4}, v{F+6}")
        A(f"v_lshlrev_b32 v{TM+1}, 11, v{TM+1}")
        A(f"s_lshr_b32 {S_T0}, {S_OWN}, 7\ns_lshl_b32 {S_T0}, {S_T0}, 10\ns_and_b32 {S_T1}, {S_OWN}, 3\ns_lshl_b32 {S_T1}, {S_T1}, 8\ns_add_u32 {S_T0}, {S_T0}, {S_T1}")
        A(f"s_bfe_u32 {S_T1}, {S_OWN}, 0x50002\ns_lshl_b32 {S_T1}, {S_T1}, 3\ns_add_u32 {S_T0}, {S_T0}, {S_T1}")
        A("s_mov_b64 exec, 3")
        A(f"buffer_store_dwordx2 v[{F+8}:{F+9}], v{TM+1}, {SRD_OUT}, {S_T0} offen")
        A("s_mov_b64 exec, -1")

    RB0 = T0 + 96; OV0 = T0 + 136; OV1 = T0 + 137
    YA = T0 + 76; RM = T0 + 84; RL = T0 + 85; RO = T0 + 86
    def owner_loads(isA):
        nrec = 2 if isA else 1
        loads = []; tags = []
        for r in range(nrec):
            b = RB0 + 20*r
            so = "s92" if r == 0 else "s94"; sm = "s93" if r == 0 else "s95"
            for t in range(2):
                loads.append(f"buffer_load_dwordx4 v[{b+8*t}:{b+8*t+3}], v{OV1}, {SRD_WS}, {so} offen offset:{128*t} sc0 sc1")
                loads.append(f"buffer_load_dwordx4 v[{b+8*t+4}:{b+8*t+7}], v{OV1}, {SRD_WS}, {so} offen offset:{128*t+16} sc0 sc1")
            loads.append(f"buffer_load_dwordx4 v[{b+16}:{b+19}], v{OV0}, {SRD_WS}, {sm} offen sc0 sc1")
            tags += [b+1+2*i for i in range(10)]
        return loads, tags
    def owner_addr(isA):
        A(f"s_bfe_u32 {S_T0}, {S_OWN}, 0x50002")
        if isA:
            A(f"s_lshr_b32 {S_T1}, {S_T0}, 2\ns_mul_i32 {S_REC}, {S_T1}, {16*4*REC}\ns_add_u32 {S_REC}, {S_REC}, {RA_OFF}")
            A(f"s_and_b32 {S_T2}, {S_T0}, 3")
            stride = 4*REC; bstr = 8*16*4*REC
        else:
            A(f"s_mul_i32 {S_REC}, {S_T0}, {4*REC}\ns_add_u32 {S_REC}, {S_REC}, {RB_OFF}")
            stride = REC; bstr = 32*4*REC
        A(f"s_mov_b32 {S_T3}, {bstr}")
        A(f"v_bfe_u32 v{OV0}, {V_N}, 2, 1\nv_mul_lo_u32 v{OV0}, v{OV0}, {S_T3}")
        A(f"v_and_b32 v{TM}, 3, {V_N}")
        if isA:
            A(f"v_lshrrev_b32 v{TM+1}, 3, {V_N}\nv_lshl_add_u32 v{TM}, v{TM+1}, 2, v{TM}\nv_lshlrev_b32 v{TM}, 1, v{TM}")
        A(f"s_mov_b32 {S_T3}, {stride}\nv_mul_lo_u32 v{TM}, v{TM}, {S_T3}\nv_add_u32 v{OV0}, v{OV0}, v{TM}")
        A(f"v_lshl_add_u32 v{OV1}, {V_G}, 5, v{OV0}")
        A(f"s_lshl_b32 {S_T1}, {S_WAVE}, 8")
        if isA:
            A(f"s_lshl_b32 {S_T3}, {S_T2}, 10\ns_add_u32 s92, {S_REC}, {S_T1}\ns_add_u32 s92, s92, {S_T3}")
            A(f"s_lshl_b32 {S_T3}, {S_T2}, 4\ns_add_u32 s93, {S_REC}, {S_T3}\ns_add_u32 s93, s93, 4096")
            A(f"s_add_u32 s94, s92, {stride}\ns_add_u32 s95, s93, {stride}")
        else:
            A(f"s_add_u32 s92, {S_REC}, {S_T1}\ns_add_u32 s93, {S_REC}, 1024")
    def owner_consume(isA, ret_label):
        b0 = RB0; b1 = RB0 + 20
        oreg = lambda b, i: b + 8*(i >> 2) + 2*(i & 3)
        if isA:
            A(f"v_max_f32 v{RM}, v{b0+16}, v{b1+16}")
            A(f"v_sub_f32 v{b0+16}, v{b0+16}, v{RM}\nv_sub_f32 v{b1+16}, v{b1+16}, v{RM}")
            A(f"v_exp_f32 v{b0+16}, v{b0+16}\nv_exp_f32 v{b1+16}, v{b1+16}")
            A("s_nop 0")
            A(f"v_mul_f32 v{RL}, v{b0+16}, v{b0+18}\nv_fmac_f32 v{RL}, v{b1+16}, v{b1+18}")
            for i in range(8):
                A(f"v_mul_f32 v{RO+i}, v{b0+16}, v{oreg(b0,i)}\nv_fmac_f32 v{RO+i}, v{b1+16}, v{oreg(b1,i)}")
        else:
            A(f"v_mov_b32 v{RM}, v{b0+16}\nv_mov_b32 v{RL}, v{b0+18}")
            for i in range(8): A(f"v_mov_b32 v{RO+i}, v{oreg(b0,i)}")
        steps = ["quad_perm:[1,0,3,2]", "quad_perm:[2,3,0,1]"] + (["row_ror:8"] if isA else [])
        MA = TM + 2
        A(f"v_mov_b32 v{MA}, v{RM}")
        for st in steps:
            A("s_nop 1")
            A(f"v_max_f32_dpp v{MA}, v{MA}, v{MA} {st} row_mask:0xf bank_mask:0xf")
        A(f"v_sub_f32 v{RM}, v{RM}, v{MA}")
        A(f"v_exp_f32 v{RM}, v{RM}")
        A("s_nop 0")
        vals = [RL] + [RO+i for i in range(8)]
        for v in vals: A(f"v_mul_f32 v{v}, v{v}, v{RM}")
        for st in steps:
            for v in vals: A(f"v_add_f32_dpp v{v}, v{v}, v{v} {st} row_mask:0xf bank_mask:0xf")
        A(f"v_rcp_f32 v{RL}, v{RL}")
        A("s_nop 0")
        for i in range(8): A(f"v_mul_f32 v{RO+i}, v{RO+i}, v{RL}")
        for i in range(8): A(f"v_mov_b32 v{YA+i}, 0")
        for t in range(2):
            A(f"v_cvt_pk_bf16_f32 v{TT}, v{RO+4*t}, v{RO+4*t+1}\nv_cvt_pk_bf16_f32 v{TT+1}, v{RO+4*t+2}, v{RO+4*t+3}")
            diag()
            A("s_nop 1")
            dmfma(YA, vop(WO + 16*t))
            A("s_nop 1")
        A("s_nop 7\ns_nop 1")
        deposit(DY, YA)
        if tst and not isA: stamp(3)
        A("s_waitcnt lgkmcnt(0)")
        A(f"s_mov_b64 exec, 1\nds_add_rtn_u32 v{TM}, {V_CNTADDR}, {V_ONE} offset:12\ns_mov_b64 exec, -1")
        A("s_waitcnt lgkmcnt(0)")
        A(f"v_readfirstlane_b32 {S_T0}, v{TM}")
        A("s_nop 3")
        A(f"s_cmp_lg_u32 {S_T0}, {NW-1}\ns_cbranch_scc1 {ret_label}")
        A(f"v_lshlrev_b32 v{TM}, 3, {V_LANE}")
        Y = T0 + 32
        for i in range(2):
            for k in range(NW): A(f"ds_read_b64 v[{Y+8*i+2*k}:{Y+8*i+2*k+1}], v{TM} offset:{DY + k*2048 + i*512}")
        A("s_waitcnt lgkmcnt(0)")
        G_ = T0 + 52
        for i in range(2):
            r = Y + 8*i
            A(f"v_add_f32 v{r}, v{r}, v{r+2}\nv_add_f32 v{r+1}, v{r+1}, v{r+3}\nv_add_f32 v{r+4}, v{r+4}, v{r+6}\nv_add_f32 v{r+5}, v{r+5}, v{r+7}")
            A(f"v_add_f32 v{G_+4*i}, v{r}, v{r+4}\nv_add_f32 v{G_+4*i+2}, v{r+1}, v{r+5}")
            A(f"v_mov_b32 v{G_+4*i+1}, {S_TAG}\nv_mov_b32 v{G_+4*i+3}, {S_TAG}")
        A(f"v_lshlrev_b32 v{TM}, 4, {V_LANE}")
        A(f"s_lshr_b32 {S_T0}, {S_OWN}, 7\ns_lshl_b32 {S_T0}, {S_T0}, 2\ns_and_b32 {S_T1}, {S_OWN}, 3\ns_add_u32 {S_T0}, {S_T0}, {S_T1}\ns_lshl_b32 {S_T0}, {S_T0}, 16")
        A(f"s_bfe_u32 {S_T1}, {S_OWN}, 0x50002\ns_lshl_b32 {S_T1}, {S_T1}, 11\ns_add_u32 {S_T0}, {S_T0}, {S_T1}\ns_add_u32 {S_T0}, {S_T0}, {YP_OFF}")
        A(f"buffer_store_dwordx4 v[{G_}:{G_+3}], v{TM}, {SRD_WS}, {S_T0} offen sc0 sc1")
        A(f"buffer_store_dwordx4 v[{G_+4}:{G_+7}], v{TM}, {SRD_WS}, {S_T0} offen offset:1024 sc0 sc1")

    if XS:
        for x in loadsA: A(x)
        A(f"s_mov_b32 {S_PH}, 1")
        for s_ in range(NS): compute(s_, KB_, False, wk=W + 8*XS + 8, wv=W + 8*XS + 8)
        for x_ in range(XS): compute(NS + x_, KB_, False, refill=False, wk=8*NS + 8*(XS-1-x_) + 12, wv=8*NS + 8*(XS-1-x_) + 8)
    A("L_loop:")
    A(f"s_cmp_lt_u32 {S_PH}, 2\ns_cbranch_scc1 L_qa")
    A(f"s_cmp_ge_u32 {S_LASTG}, {S_AEND}\ns_cbranch_scc1 L_afl")
    A("L_loop_c:")
    for s in range(NS):
        A(f"s_cmp_ge_u32 {S_IDX[s]}, 0x{INVALID:x}\ns_cbranch_scc1 L_done")
        compute_typed(s)
    A("s_branch L_loop")
    A("L_afl:")
    A(f"s_or_b32 {S_T0}, {S_IDX[0]}, {S_IDX[1]}")
    for q in range(2, NS): A(f"s_or_b32 {S_T0}, {S_T0}, {S_IDX[q]}")
    A(f"s_bitcmp1_b32 {S_T0}, 12\ns_cbranch_scc1 L_loop_c")
    A(f"s_mov_b32 {S_AEND}, -1")
    flush(DA, MLA, 4, True)
    A("s_branch L_loop_c")
    A("L_qa:")
    A(f"s_cmp_lg_u32 {S_PH}, 0\ns_cbranch_scc1 L_qa2")
    A(f"s_mov_b32 {S_PH}, 1")
    for x in loadsA: A(x)
    A("s_branch L_loop_c")
    A("L_qa2:")
    A(f"s_mov_b32 {S_PH}, 2")
    poll(loadsA, tagsA, "qa", sleep=2, pre_issued_wait=8*NS)
    for h in range(2):
        r = T0 + 8*h
        A(f"v_add_f32 v{r}, v{r}, v{r+2}\nv_add_f32 v{r+4}, v{r+4}, v{r+6}\nv_add_f32 v{r}, v{r}, v{r+4}")
        A(f"v_cvt_pk_bf16_f32 v{r}, v{r}, v{r}")
    A(f"v_lshlrev_b32 v{TM+2}, 1, {V_TID}")
    A(f"ds_write_b16 v{TM+2}, v{T0} offset:{QL}\nds_write_b16 v{TM+2}, v{T0+8} offset:{QL+512}")
    A("s_waitcnt lgkmcnt(0)")
    A(f"s_mov_b64 exec, 1\nds_add_u32 {V_CNTADDR}, {V_ONE} offset:16\ns_mov_b64 exec, -1")
    if not tst: stamp(3)
    A("s_branch L_loop_c")
    i = 0
    while i < len(ool):
        ool[i](); i += 1
    A("L_done:")
    stamp(4)
    flush(DB, MLB, 8, False)
    A(f"s_cmp_eq_u32 {S_AEND}, -1\ns_cbranch_scc1 L_done2")
    flush(DA, MLA, 4, True)
    A("L_done2:")
    stamp(5)
    A(f"s_cmp_lt_u32 {S_OWN}, 128\ns_cbranch_scc1 L_tailA")
    owner_addr(False)
    lb_, tb_ = owner_loads(False)
    poll(lb_, tb_, "brec", sleep=1)
    if tst: stamp(2)
    owner_consume(False, "L_end")
    if stamps: stamp_now(6)
    final_stage()
    if stamps: stamp_now(7)
    A("s_branch L_end")
    A("L_tailA:")
    owner_addr(True)
    la, ta = owner_loads(True)
    poll(la, ta, "arec", sleep=1)
    owner_consume(True, "L_end")
    if stamps: stamp_now(6)
    final_stage()
    if stamps: stamp_now(7)
    A(f"s_cmp_lg_u32 {S_OWN}, 0\ns_cbranch_scc1 L_end")
    A(f"s_mov_b64 exec, 1\nv_mov_b32 v{T0+10}, {S_TAG}")
    A(f"buffer_store_dword v{T0+10}, off, {SRD_WS}, 0 sc0 sc1")
    A("L_end:")
    A("s_endpgm")
    return g.L, NARCH + 32*(NS+XS)

HEADER = open("cdna_kernels/" + NAME + ".s.ref").read().split("; Override launch geometry")[0]

def emit(opt, path):
    body, nvgpr = build(opt)
    out = HEADER
    out += "; Override launch geometry by editing the next line (default: block=256,\n"
    out += f"; @launch grid=(256,1,1) block=({NW*64},1,1) lds={LDS_BYTES}\n"
    out += '.amdgcn_target "amdgcn-amd-amdhsa--gfx950"\n.text\n'
    out += f".globl {KN}\n.p2align 8\n.type {KN},@function\n{KN}:\n"
    out += "\n".join(body) + "\n"
    out += f""".section .rodata,"a"
.p2align 6
.amdhsa_kernel {KN}
  .amdhsa_next_free_vgpr {nvgpr}
  .amdhsa_next_free_sgpr 102
  .amdhsa_accum_offset {NARCH}
  .amdhsa_group_segment_fixed_size 0
  .amdhsa_kernarg_size 104
  .amdhsa_user_sgpr_count 2
  .amdhsa_user_sgpr_kernarg_segment_ptr 1
  .amdhsa_system_sgpr_workgroup_id_x 1
.end_amdhsa_kernel
"""
    open(path, "w").write(out)

if __name__ == "__main__":
    opt = {}
    path = "cdna_kernels/" + NAME + ".s"
    for a in sys.argv[1:]:
        if a.startswith("-o"): path = a[2:]
        elif "=" in a:
            k, v = a.split("="); opt[k] = int(v)
    emit(opt, path)
```
